```python
import torch

def _softmax(x, axis=-1):
    return torch.softmax(x, dim=axis)
def _gelu(x):
    return torch.nn.functional.gelu(x, approximate="tanh")
def _silu(x):
    return torch.nn.functional.silu(x)
def _sigmoid(x):
    return torch.sigmoid(x)
def _layernorm(x, axis=-1, eps=1e-5):
    m = x.mean(dim=axis, keepdim=True)
    v = x.var(dim=axis, keepdim=True, unbiased=False)
    return (x - m) / torch.sqrt(v + eps)
def _scatter_add(tgt, idx, src, axis=0):
    return tgt.clone().index_add_(axis, idx, src)
def _segment_sum(src, seg, n):
    out = torch.zeros((n,) + src.shape[1:], dtype=src.dtype)
    return out.index_add_(0, seg, src)
def _pad(x, pw):
    flat = tuple(v for pair in reversed(pw) for v in pair)
    return torch.nn.functional.pad(x, flat)

kernel_name = 'recurrent_scan__gqa_block_cached__glu_gated_glu__decode'

def setup_inputs():

    _w = (lambda a: (lambda t: t.to(torch.bfloat16) if t.is_floating_point() else t)(torch.as_tensor(a)))
    def _A_setup():
        B, Sq, D = 8, 1, 1024
        Hq, Hkv, Sk, Dh = 32, 4, 4096, 128
        assert Hq % Hkv == 0, (Hq, Hkv)
        return {
            "x": _w((lambda *s: torch.randn(*s, dtype=torch.bfloat16) * 0.05)(B, Sq, D)),
            "k_cache": _w((lambda *s: torch.randn(*s, dtype=torch.bfloat16) * 1.6)(B, Hkv, Sk, Dh)),
            "v_cache": _w((lambda *s: torch.randn(*s, dtype=torch.bfloat16) * 0.2)(B, Hkv, Sk, Dh)),
            "wq": _w((lambda *s: torch.randn(*s, dtype=torch.bfloat16) * 1.6)(D, Hq * Dh) * (D ** -0.5)),
            "wo": _w((lambda *s: torch.randn(*s, dtype=torch.bfloat16) * 0.2)(Hq * Dh, D) * ((Hq * Dh) ** -0.5)),
        }
    _A_in = _A_setup()

    def _B_setup():
        B, S, D, F = 8, 1, 1024, 3584
        return {
            "x": _w((lambda *s: torch.randn(*s, dtype=torch.bfloat16) * 0.05)(B, S, D)),
            "w_gate": _w((lambda *s: torch.randn(*s, dtype=torch.bfloat16) * 0.2)(D, F)),
            "w_up": _w((lambda *s: torch.randn(*s, dtype=torch.bfloat16) * 0.1)(D, F)),
            "w_down": _w((lambda *s: torch.randn(*s, dtype=torch.bfloat16) * 0.1)(F, D)),
        }
    _B_in = _B_setup()

    return {
        "A_x": _A_in["x"],
        "A_k_cache": _A_in["k_cache"],
        "A_v_cache": _A_in["v_cache"],
        "A_wq": _A_in["wq"],
        "A_wo": _A_in["wo"],
        "B_x": _B_in["x"],
        "B_w_gate": _B_in["w_gate"],
        "B_w_up": _B_in["w_up"],
        "B_w_down": _B_in["w_down"],
    }

def reference(A_x, A_k_cache, A_v_cache, A_wq, A_wo, B_x, B_w_gate, B_w_up, B_w_down):
    def _A_ref(x, k_cache, v_cache, wq, wo):
        B, Sq, D = x.shape
        Hq, Dh = 32, 128
        Hkv = k_cache.shape[1]
        rep = Hq // Hkv
        q = (lambda x, *d: x.permute(*d))((x @ wq).reshape(B, Sq, Hq, Dh), 0, 2, 1, 3)
        k = (lambda x, n, axis: torch.repeat_interleave(x, n, dim=axis))(k_cache, rep, axis=1)
        v = (lambda x, n, axis: torch.repeat_interleave(x, n, dim=axis))(v_cache, rep, axis=1)
        scores = torch.einsum("bhqd,bhkd->bhqk", q, k) * (Dh ** -0.5)
        p = _softmax(scores, axis=-1)
        o = torch.einsum("bhqk,bhkd->bhqd", p, v)
        return (lambda x, *d: x.permute(*d))(o, 0, 2, 1, 3).reshape(B, Sq, Hq * Dh) @ wo

    def _B_ref(x, w_gate, w_up, w_down):
        g = torch.einsum("bsd,df->bsf", x, w_gate)
        u = torch.einsum("bsd,df->bsf", x, w_up)
        h = _sigmoid(g) * u
        return torch.einsum("bsf,fd->bsd", h, w_down)

    x = A_x
    xn = _layernorm(x, axis=-1)
    s = _A_ref(xn, A_k_cache, A_v_cache, A_wq, A_wo)
    g = _silu(_B_ref(xn, B_w_gate, B_w_up, B_w_down))
    return x + s * g
```

```python
import sys, os
NAME = "recurrent_scan__gqa_block_cached__glu_gated_glu__decode"
STAMP = os.environ.get("STAMP", "0") == "1"
NT = " nt"
L = []
def A(s): L.append("  " + s)
def LBL(s): L.append(s + ":")
def C(s): L.append("  ; " + s)
def nop(n):
    while n > 0:
        k = min(n, 16); A("s_nop %d" % (k - 1)); n -= k
def vr(a, n=1): return "v%d" % a if n == 1 else "v[%d:%d]" % (a, a + n - 1)
def sr(a, n=1): return "s%d" % a if n == 1 else "s[%d:%d]" % (a, a + n - 1)

WS_E = 0x0
WS_FA = 0x1000; WS_FB = 0x2000; WS_FC = 0x3000; WS_FD = 0x4000
WS_Q = 0x100000
WS_GU = 0x200000
WS_O = 0x400000
WS_ML = 0x600000
WS_S = 0x800000
WS_D = 0xA00000
WS_SIZE = 0x1000000
XN = 0x0000; QL = 0x4000; HL = 0x4800; OL = 0x5000; MX = 0x5800; LS = 0x5900; TR = 0x6000
TA = 0x7000; TB = 0x10000; TC = 0x19000
LDS_SIZE = 0x22000
sWG = 2; sWAVE = 3
sSELLO = 4; sSELHI = 5; sTAG = 6; sT0 = 7; sT1 = 8; sT2 = 9; sT3 = 10; sT4 = 11; sT5 = 12; sT6 = 13; sT7 = 14; sCNT = 15
P = 16
pX, pK, pV, pWQ, pWO, pBX, pWG, pWU, pWD, pOUT, pDBG, pWS = [P + 2 * i for i in range(12)]
rX, rK, rV, rWQ, rGU, rWD, rWO, rWS, rOUT, rDBG = [40 + 4 * i for i in range(10)]
sA0 = 80
sLOG2E = 96; sSCALE = 97; sTM0 = 98

def srd(r, p, nbytes):
    A("s_mov_b32 s%d, s%d" % (r, p)); A("s_and_b32 s%d, s%d, 0xffff" % (r + 1, p + 1))
    A("s_mov_b32 s%d, 0x%x" % (r + 2, nbytes)); A("s_mov_b32 s%d, 0x20000" % (r + 3))

def stamp(slot):
    if not STAMP: return
    A("s_cmp_lg_u32 s%d, %d" % (sWG, int(os.environ.get("STAMPWG", "0"))))
    A("s_cbranch_scc1 L_st%d" % slot)
    A("s_memrealtime s[98:99]")
    A("s_waitcnt lgkmcnt(0)")
    A("v_mov_b32 v166, s98"); A("v_mov_b32 v167, %d" % (slot * 4))
    A("s_mov_b64 exec, 1")
    A("buffer_store_dword v166, v167, %s, 0 offen" % sr(rDBG, 4))
    A("s_mov_b64 exec, -1")
    LBL("L_st%d" % slot)

def bf16r_pair(a, b, t):
    A("v_cvt_pk_bf16_f32 v%d, v%d, v%d" % (t, a, b))
    A("v_lshlrev_b32 v%d, 16, v%d" % (a, t))
    A("v_and_b32 v%d, 0xffff0000, v%d" % (b, t))
def bf16r(a, t):
    A("v_cvt_pk_bf16_f32 v%d, v%d, v%d" % (t, a, a))
    A("v_lshlrev_b32 v%d, 16, v%d" % (a, t))

def xlane_hi(op, x, ta, tb):
    for sw in ("v_permlane16_swap_b32", "v_permlane32_swap_b32"):
        A("v_mov_b32 v%d, v%d" % (ta, x)); A("v_mov_b32 v%d, v%d" % (tb, x)); nop(2)
        A("%s v%d, v%d" % (sw, ta, tb)); nop(1)
        A("%s v%d, v%d, v%d" % (op, x, ta, tb))
def xlane_row(op, x, t):
    for m in ("quad_perm:[1,0,3,2]", "quad_perm:[2,3,0,1]", "row_half_mirror", "row_mirror"):
        nop(2)
        A("%s_dpp v%d, v%d, v%d %s row_mask:0xf bank_mask:0xf" % (op, t, x, x, m))
        A("v_mov_b32 v%d, v%d" % (x, t))

def tile_mfma(rows, nrows, Areg, acc, tmp, first_zero=True):
    nb = nrows // 2
    def perms(j):
        t = tmp + 4 * (j & 1); q = j >> 1; sel = sSELHI if (j & 1) else sSELLO
        for p in range(nb):
            A("v_perm_b32 v%d, v%d, v%d, s%d" % (t + p, rows + 4 * (2 * p + 1) + q, rows + 4 * (2 * p) + q, sel))
    def mf(j):
        t = tmp + 4 * (j & 1)
        c = "0" if first_zero else vr(acc + 4 * j, 4)
        if nrows == 4:
            A("v_mfma_f32_16x16x16_bf16 %s, %s, %s, %s" % (vr(acc + 4 * j, 4), vr(Areg, 2), vr(t, 2), c))
        else:
            A("v_mfma_f32_16x16x32_bf16 %s, %s, %s, %s" % (vr(acc + 4 * j, 4), vr(Areg, 4), vr(t, 4), c))
    perms(0); perms(1)
    for j in range(8):
        mf(j)
        if j + 2 < 8: perms(j + 2)

def tile_store(acc, vaddr, lo, hi):
    nop(8)
    A("s_mov_b32 exec_lo, 0x%x" % lo); A("s_mov_b32 exec_hi, 0x%x" % hi)
    for j in range(8):
        A("ds_write_b128 v%d, %s offset:%d" % (vaddr, vr(acc + 4 * j, 4), j * 32))
    A("s_mov_b64 exec, -1")

def barrier():
    A("s_waitcnt lgkmcnt(0)"); A("s_barrier")

L.append("; @launch grid=(256,1,1) block=(576,1,1) lds=%d" % LDS_SIZE)
L.append('.amdgcn_target "amdgcn-amd-amdhsa--gfx950"')
L.append(".text")
L.append(".globl %s_kernel" % NAME)
L.append(".p2align 8")
L.append(".type %s_kernel,@function" % NAME)
LBL("%s_kernel" % NAME)
A("s_cmp_ge_u32 s2, 256")
A("s_cbranch_scc1 L_done")
A("s_load_dwordx16 s[16:31], s[0:1], 0")
A("s_load_dwordx8 s[32:39], s[0:1], 64")
A("v_lshrrev_b32 v1, 6, v0")
A("v_and_b32 v2, 63, v0")
A("v_and_b32 v3, 15, v0")
A("v_readfirstlane_b32 s%d, v1" % sWAVE)
A("v_lshrrev_b32 v4, 4, v2")
A("s_mov_b32 s%d, 0x05040100" % sSELLO)
A("s_mov_b32 s%d, 0x07060302" % sSELHI)
A("s_mov_b32 s%d, 0x3fb8aa3b" % sLOG2E)
A("s_mov_b32 s%d, 0x3db504f3" % sSCALE)
A("s_waitcnt lgkmcnt(0)")
srd(rX, pX, 16384); srd(rK, pK, 33554432); srd(rV, pV, 33554432); srd(rWQ, pWQ, 8388608)
A("s_and_b32 s%d, s%d, 1" % (sT0, sWG))
A("s_cmp_eq_u32 s%d, 0" % sT0)
A("s_cselect_b32 s%d, s%d, s%d" % (rGU, pWG, pWU))
A("s_cselect_b32 s%d, s%d, s%d" % (rGU + 1, pWG + 1, pWU + 1))
A("s_and_b32 s%d, s%d, 0xffff" % (rGU + 1, rGU + 1))
A("s_mov_b32 s%d, 7340032" % (rGU + 2)); A("s_mov_b32 s%d, 0x20000" % (rGU + 3))
srd(rWD, pWD, 7340032); srd(rWO, pWO, 8388608); srd(rWS, pWS, WS_SIZE); srd(rOUT, pOUT, 16384); srd(rDBG, pDBG, 256)
A("s_cmp_eq_u32 s%d, 8" % sWAVE)
A("s_cbranch_scc1 L_service")

C("---------------- streaming wave ----------------")
KR = 16; WQR = 80; GUR = 96; VR_ = 80; ACC = 128; SC = 144; QF = 160; TMP = 8
DR = 16; WOR = 32; PACC = 48
XR = 144; XF = 152
vA = 5; vB = 6; vC = 7
A("v_lshlrev_b32 v%d, 4, v2" % vA)
A("s_lshl_b32 s%d, s%d, 11" % (sA0, sWAVE))
A("buffer_load_dwordx4 %s, v%d, %s, s%d offen" % (vr(XR, 4), vA, sr(rX, 4), sA0))
A("buffer_load_dwordx4 %s, v%d, %s, s%d offen offset:1024" % (vr(XR + 4, 4), vA, sr(rX, 4), sA0))
A("v_lshrrev_b32 v%d, 3, v3" % vB)
A("v_lshlrev_b32 v%d, 2, v%d" % (vB, vB))
A("v_add_u32 v%d, v%d, v4" % (vB, vB))
A("v_lshlrev_b32 v%d, 15, v%d" % (vB, vB))
A("v_and_b32 v%d, 7, v3" % vC)
A("v_lshl_add_u32 v%d, v%d, 4, v%d" % (vB, vC, vB))
A("s_lshr_b32 s%d, s%d, 6" % (sT0, sWG))
A("s_lshl_b32 s%d, s%d, 3" % (sT0, sT0))
A("s_add_u32 s%d, s%d, s%d" % (sT0, sT0, sWAVE))
A("s_lshl_b32 s%d, s%d, 18" % (sT0, sT0))
A("s_and_b32 s%d, s%d, 63" % (sT1, sWG))
A("s_lshl_b32 s%d, s%d, 7" % (sT1, sT1))
A("s_add_u32 s%d, s%d, s%d" % (sA0, sT0, sT1))
for i in range(1, 4): A("s_add_u32 s%d, s%d, %d" % (sA0 + i, sA0, i * 8192))
for i in range(4):
    A("buffer_load_dwordx4 %s, v%d, %s, s%d offen%s" % (vr(WQR + 4 * i, 4), vB, sr(rWQ, 4), sA0 + i, NT))
A("v_mul_u32_u24 v%d, 57344, v4" % vB)
A("v_lshl_add_u32 v%d, v3, 4, v%d" % (vB, vB))
A("s_lshr_b32 s%d, s%d, 1" % (sT0, sWG))
A("s_and_b32 s%d, s%d, 3" % (sT1, sT0))
A("s_lshr_b32 s%d, s%d, 2" % (sT2, sT0))
A("s_lshl_b32 s%d, s%d, 3" % (sT1, sT1))
A("s_add_u32 s%d, s%d, s%d" % (sT1, sT1, sWAVE))
A("s_mul_i32 s%d, s%d, %d" % (sT1, sT1, 32 * 7168))
A("s_lshl_b32 s%d, s%d, 8" % (sT2, sT2))
A("s_add_u32 s%d, s%d, s%d" % (sA0 + 4, sT1, sT2))
A("s_cmp_ge_u32 s%d, 224" % sWG)
A("s_cselect_b32 s%d, 7340032, s%d" % (sA0 + 4, sA0 + 4))
for i in range(1, 8): A("s_add_u32 s%d, s%d, %d" % (sA0 + 4 + i, sA0 + 4, i * 7168))
for i in range(8):
    A("buffer_load_dwordx4 %s, v%d, %s, s%d offen%s" % (vr(GUR + 4 * i, 4), vB, sr(rGU, 4), sA0 + 4 + i, NT))
A("v_lshrrev_b32 v%d, 2, v3" % vB)
A("v_lshlrev_b32 v%d, 3, v%d" % (vB, vB))
A("v_and_b32 v%d, 3, v3" % vC)
A("v_add_u32 v%d, v%d, v%d" % (vB, vB, vC))
A("v_lshlrev_b32 v%d, 8, v%d" % (vB, vB))
A("v_lshl_add_u32 v%d, v4, 4, v%d" % (vB, vB))
sKB = sA0 + 12
A("s_lshl_b32 s%d, s%d, 17" % (sKB, sWG))
A("s_lshl_b32 s%d, s%d, 14" % (sT0, sWAVE))
A("s_add_u32 s%d, s%d, s%d" % (sKB, sKB, sT0))
A("s_add_u32 s%d, s%d, 8192" % (sKB + 1, sKB))
for u in range(2):
    for T in range(2):
        for d in range(4):
            A("buffer_load_dwordx4 %s, v%d, %s, s%d offen offset:%d%s" % (vr(KR + 16 * (2 * u + T) + 4 * d, 4), vB, sr(rK, 4), sKB + u, T * 1024 + d * 64, NT))
C("layernorm")
A("s_waitcnt vmcnt(28)")
for q in range(8):
    A("v_lshlrev_b32 v%d, 16, v%d" % (XF + 2 * q, XR + q))
    A("v_and_b32 v%d, 0xffff0000, v%d" % (XF + 2 * q + 1, XR + q))
s_ = 8; t_ = 9; u_ = 10; m_ = 11; r_ = 12; sd_ = 13
A("v_add_f32 v%d, v%d, v%d" % (s_, XF, XF + 1))
for i in range(2, 16): A("v_add_f32 v%d, v%d, v%d" % (s_, s_, XF + i))
xlane_row("v_add_f32", s_, t_); xlane_hi("v_add_f32", s_, t_, u_)
A("v_mul_f32 v%d, 0x3a800000, v%d" % (m_, s_))
A("v_mov_b32 v%d, 0" % s_)
for i in range(16):
    A("v_sub_f32 v%d, v%d, v%d" % (t_, XF + i, m_))
    A("v_fmac_f32 v%d, v%d, v%d" % (s_, t_, t_))
xlane_row("v_add_f32", s_, t_); xlane_hi("v_add_f32", s_, t_, u_)
A("v_mul_f32 v%d, 0x3a800000, v%d" % (s_, s_))
bf16r(m_, t_); bf16r(s_, t_)
A("v_add_f32 v%d, 0x3727c5ac, v%d" % (s_, s_)); bf16r(s_, t_)
A("v_sqrt_f32 v%d, v%d" % (sd_, s_)); nop(1); bf16r(sd_, t_)
A("v_rcp_f32 v%d, v%d" % (r_, sd_)); nop(1)
for i in range(16): A("v_sub_f32 v%d, v%d, v%d" % (XF + i, XF + i, m_))
for q in range(8): bf16r_pair(XF + 2 * q, XF + 2 * q + 1, t_)
for i in range(16):
    A("v_mul_f32 v%d, v%d, v%d" % (t_, XF + i, r_))
    A("v_fma_f32 v%d, -v%d, v%d, v%d" % (u_, t_, sd_, XF + i))
    A("v_fma_f32 v%d, v%d, v%d, v%d" % (XF + i, u_, r_, t_))
for q in range(8): A("v_cvt_pk_bf16_f32 v%d, v%d, v%d" % (XR + q, XF + 2 * q, XF + 2 * q + 1))
A("s_lshl_b32 s%d, s%d, 11" % (sT0, sWAVE))
A("v_lshlrev_b32 v%d, 4, v2" % vA)
A("v_add_u32 v%d, s%d, v%d" % (vA, sT0, vA))
A("ds_write_b128 v%d, %s offset:%d" % (vA, vr(XR, 4), XN))
A("ds_write_b128 v%d, %s offset:%d" % (vA, vr(XR + 4, 4), XN + 1024))
barrier()
C("phase A: wq half tile (two k-sets in rows 0-7 / 8-15)")
AF = 160
A("v_and_b32 v%d, 7, v3" % vA)
A("v_lshlrev_b32 v%d, 11, v%d" % (vA, vA))
A("v_lshrrev_b32 v%d, 3, v3" % vB)
A("v_lshlrev_b32 v%d, 5, v%d" % (vB, vB))
A("v_lshl_add_u32 v%d, v4, 3, v%d" % (vB, vB))
A("v_add_u32 v%d, v%d, v%d" % (vB, vB, vA))
A("s_lshr_b32 s%d, s%d, 6" % (sT0, sWG))
A("s_lshl_b32 s%d, s%d, 3" % (sT0, sT0))
A("s_add_u32 s%d, s%d, s%d" % (sT0, sT0, sWAVE))
A("s_lshl_b32 s%d, s%d, 6" % (sT0, sT0))
A("v_add_u32 v%d, s%d, v%d" % (vB, sT0, vB))
A("ds_read_b64 %s, v%d offset:%d" % (vr(AF, 2), vB, XN))
A("v_lshl_add_u32 v%d, v4, 4, v%d" % (vB, vA))
A("s_lshr_b32 s%d, s%d, 1" % (sT0, sWG))
A("s_and_b32 s%d, s%d, 3" % (sT0, sT0))
A("s_lshl_b32 s%d, s%d, 3" % (sT0, sT0))
A("s_add_u32 s%d, s%d, s%d" % (sT0, sT0, sWAVE))
A("s_lshl_b32 s%d, s%d, 6" % (sT0, sT0))
A("v_add_u32 v%d, s%d, v%d" % (vB, sT0, vB))
A("ds_read_b128 %s, v%d offset:%d" % (vr(AF + 4, 4), vB, XN))
A("v_lshrrev_b32 v%d, 1, v4" % vA)
A("s_lshl_b32 s%d, s%d, 1" % (sT0, sWAVE))
A("v_add_u32 v%d, s%d, v%d" % (vA, sT0, vA))
A("v_mul_u32_u24 v%d, 2176, v%d" % (vA, vA))
A("v_and_b32 v%d, 7, v3" % vB)
A("v_mul_u32_u24 v%d, 272, v%d" % (vB, vB))
A("v_add_u32 v%d, v%d, v%d" % (vA, vA, vB))
A("v_and_b32 v%d, 1, v4" % vB)
A("v_lshl_add_u32 v%d, v%d, 4, v%d" % (vA, vB, vA))
A("v_add_u32 v%d, %d, v%d" % (vA, TA, vA))
A("v_mul_u32_u24 v%d, 272, v3" % vC)
A("v_lshl_add_u32 v%d, v4, 4, v%d" % (vC, vC))
A("s_mul_i32 s%d, s%d, 4352" % (sT0, sWAVE))
A("v_add_u32 v%d, s%d, v%d" % (vC, sT0, vC))
A("s_waitcnt vmcnt(24) lgkmcnt(0)")
tile_mfma(WQR, 4, AF, ACC, TMP)
tile_store(ACC, vA, 0x00ff00ff, 0xff00ff00)
barrier()
C("phase B: gate/up tile")
A("v_add_u32 v%d, %d, v%d" % (vA, TB, vC))
A("s_waitcnt vmcnt(16)")
tile_mfma(GUR, 8, AF + 4, ACC, TMP)
tile_store(ACC, vA, 0xffffffff, 0)
nop(2)
A("v_lshlrev_b32 v%d, 11, v4" % vB)
A("v_lshl_add_u32 v%d, v3, 4, v%d" % (vB, vB))
A("s_waitcnt lgkmcnt(0)")
for u in range(2):
    for e in range(8):
        A("buffer_load_dwordx4 %s, v%d, %s, s%d offen offset:%d%s" % (vr(VR_ + 32 * u + 4 * e, 4), vB, sr(rV, 4), sKB + u, e * 256, NT))
A("s_barrier")
A("s_barrier")
C("QK^T")
A("v_and_b32 v%d, 7, v3" % vA)
A("v_lshlrev_b32 v%d, 8, v%d" % (vA, vA))
A("v_lshl_add_u32 v%d, v4, 4, v%d" % (vA, vA))
A("ds_read_b128 %s, v%d offset:%d" % (vr(QF, 4), vA, QL))
A("ds_read_b128 %s, v%d offset:%d" % (vr(QF + 4, 4), vA, QL + 64))
A("s_waitcnt vmcnt(16)")
for d in range(4):
    qf = QF + 4 * (d & 1)
    A("s_waitcnt lgkmcnt(%d)" % (1 if d < 3 else 0))
    for t in range(4):
        c = "0" if d == 0 else vr(SC + 4 * t, 4)
        A("v_mfma_f32_16x16x32_bf16 %s, %s, %s, %s" % (vr(SC + 4 * t, 4), vr(KR + 16 * t + 4 * d, 4), vr(qf, 4), c))
    if d + 2 < 4:
        nop(4)
        A("ds_read_b128 %s, v%d offset:%d" % (vr(qf, 4), vA, QL + 64 * (d + 2)))
nop(8)
A("v_lshlrev_b32 v%d, 13, v4" % vB)
A("v_lshl_add_u32 v%d, v3, 4, v%d" % (vB, vB))
A("s_lshr_b32 s%d, s%d, 3" % (sT0, sWG))
A("s_and_b32 s%d, s%d, 7" % (sT1, sWG))
A("s_lshl_b32 s%d, s%d, 8" % (sT1, sT1))
A("s_lshl_b32 s%d, s%d, 15" % (sT2, sWAVE))
A("s_add_u32 s%d, s%d, s%d" % (sT1, sT1, sT2))
A("s_mul_i32 s%d, s%d, %d" % (sT3, sT0, 112 * 2048))
A("s_add_u32 s%d, s%d, s%d" % (sA0, sT3, sT1))
A("s_cmp_eq_u32 s%d, 7" % sWAVE)
A("s_cselect_b32 s%d, 7340032, s%d" % (sA0, sA0))
A("s_add_u32 s%d, s%d, 4096" % (sA0 + 1, sA0))
A("s_lshl_b32 s%d, s%d, 18" % (sT3, sT0))
A("s_add_u32 s%d, s%d, s%d" % (sA0 + 2, sT3, sT1))
A("s_add_u32 s%d, s%d, 4096" % (sA0 + 3, sA0 + 2))
for t in range(4):
    A("buffer_load_dwordx4 %s, v%d, %s, s%d offen offset:%d%s" % (vr(DR + 4 * t, 4), vB, sr(rWD, 4), sA0 + (t >> 1), (t & 1) * 2048, NT))
for t in range(4):
    A("buffer_load_dwordx4 %s, v%d, %s, s%d offen offset:%d%s" % (vr(WOR + 4 * t, 4), vB, sr(rWO, 4), sA0 + 2 + (t >> 1), (t & 1) * 2048, NT))
C("scores: bf16 round, scale, bf16 round; max")
for q in range(8): bf16r_pair(SC + 2 * q, SC + 2 * q + 1, t_)
for i in range(16): A("v_mul_f32 v%d, s%d, v%d" % (SC + i, sSCALE, SC + i))
for q in range(8): bf16r_pair(SC + 2 * q, SC + 2 * q + 1, t_)
A("v_max3_f32 v%d, v%d, v%d, v%d" % (m_, SC, SC + 1, SC + 2))
for i in range(3, 15, 2): A("v_max3_f32 v%d, v%d, v%d, v%d" % (m_, m_, SC + i, SC + i + 1))
A("v_max_f32 v%d, v%d, v%d" % (m_, m_, SC + 15))
xlane_hi("v_max_f32", m_, t_, u_)
A("v_lshlrev_b32 v%d, 5, v3" % vA)
A("s_lshl_b32 s%d, s%d, 2" % (sT0, sWAVE))
A("v_add_u32 v%d, s%d, v%d" % (vA, sT0, vA))
A("s_mov_b64 exec, 0xff")
A("ds_write_b32 v%d, v%d offset:%d" % (vA, m_, MX))
A("s_mov_b64 exec, -1")
barrier()
A("v_and_b32 v%d, 7, v3" % vB)
A("v_lshlrev_b32 v%d, 5, v%d" % (vB, vB))
A("ds_read_b128 %s, v%d offset:%d" % (vr(QF, 4), vB, MX))
A("ds_read_b128 %s, v%d offset:%d" % (vr(QF + 4, 4), vB, MX + 16))
A("s_waitcnt lgkmcnt(0)")
A("v_max3_f32 v%d, v%d, v%d, v%d" % (m_, QF, QF + 1, QF + 2))
A("v_max3_f32 v%d, v%d, v%d, v%d" % (m_, m_, QF + 3, QF + 4))
A("v_max3_f32 v%d, v%d, v%d, v%d" % (m_, m_, QF + 5, QF + 6))
A("v_max_f32 v%d, v%d, v%d" % (m_, m_, QF + 7))
A("v_mul_f32 v%d, s%d, v%d" % (m_, sLOG2E, m_))
for i in range(16): A("v_fma_f32 v%d, v%d, s%d, -v%d" % (SC + i, SC + i, sLOG2E, m_))
for i in range(16): A("v_exp_f32 v%d, v%d" % (SC + i, SC + i))
nop(1)
A("v_add_f32 v%d, v%d, v%d" % (s_, SC, SC + 1))
for i in range(2, 16): A("v_add_f32 v%d, v%d, v%d" % (s_, s_, SC + i))
PF = QF
for q in range(8): A("v_cvt_pk_bf16_f32 v%d, v%d, v%d" % (PF + q, SC + 2 * q, SC + 2 * q + 1))
xlane_hi("v_add_f32", s_, t_, u_)
A("s_mov_b64 exec, 0xff")
A("ds_write_b32 v%d, v%d offset:%d" % (vA, s_, LS))
A("s_mov_b64 exec, -1")
C("PV")
A("s_waitcnt vmcnt(16)")
tile_mfma(VR_, 8, PF, PACC, TMP, True)
A("s_waitcnt vmcnt(8)")
tile_mfma(VR_ + 32, 8, PF + 4, PACC, TMP, False)
A("v_add_u32 v%d, %d, v%d" % (vA, TC, vC))
tile_store(PACC, vA, 0xffffffff, 0)
barrier()
C("phase D: down half tile")
A("v_and_b32 v%d, 7, v3" % vB)
A("v_lshlrev_b32 v%d, 8, v%d" % (vB, vB))
A("v_lshl_add_u32 v%d, v4, 3, v%d" % (vB, vB))
A("s_lshl_b32 s%d, s%d, 5" % (sT0, sWAVE))
A("v_add_u32 v%d, s%d, v%d" % (vB, sT0, vB))
A("ds_read_b64 %s, v%d offset:%d" % (vr(AF, 2), vB, HL))
A("v_add_u32 v%d, %d, v%d" % (vA, TA, vC))
A("s_waitcnt vmcnt(4) lgkmcnt(0)")
tile_mfma(DR, 4, AF, PACC, TMP)
tile_store(PACC, vA, 0xffffffff, 0)
barrier()
C("gather + combine o for batch = wave")
OG = 80
A("v_lshlrev_b32 v%d, 3, v2" % vA)
A("s_lshr_b32 s%d, s%d, 6" % (sT0, sWG))
A("s_lshr_b32 s%d, s%d, 3" % (sT1, sWG))
A("s_and_b32 s%d, s%d, 7" % (sT1, sT1))
A("s_lshl_b32 s%d, s%d, 2" % (sT2, sWAVE))
A("s_add_u32 s%d, s%d, s%d" % (sT2, sT2, sT0))
A("s_lshl_b32 s%d, s%d, 15" % (sT3, sT2))
A("s_lshl_b32 s%d, s%d, 9" % (sT4, sT1))
A("s_add_u32 s%d, s%d, s%d" % (sT3, sT3, sT4))
A("s_add_u32 s%d, s%d, 0x%x" % (sA0, sT3, WS_O))
for sp in range(1, 8): A("s_add_u32 s%d, s%d, %d" % (sA0 + sp, sA0, sp * 4096))
for sp in range(8):
    A("buffer_load_dwordx2 %s, v%d, %s, s%d offen sc1" % (vr(OG + 2 * sp, 2), vA, sr(rWS, 4), sA0 + sp))
A("s_lshl_b32 s%d, s%d, 9" % (sT3, sT2))
A("s_lshl_b32 s%d, s%d, 6" % (sT4, sT1))
A("s_add_u32 s%d, s%d, s%d" % (sT3, sT3, sT4))
A("s_add_u32 s%d, s%d, 0x%x" % (sA0 + 8, sT3, WS_ML))
A("v_mov_b32 v%d, 0" % vB)
MLR = 96
for t in range(4):
    A("buffer_load_dwordx4 %s, v%d, %s, s%d offen offset:%d sc1" % (vr(MLR + 4 * t, 4), vB, sr(rWS, 4), sA0 + 8, 16 * t))
A("s_waitcnt vmcnt(0)")
A("v_max3_f32 v%d, v%d, v%d, v%d" % (m_, MLR, MLR + 2, MLR + 4))
A("v_max3_f32 v%d, v%d, v%d, v%d" % (m_, m_, MLR + 6, MLR + 8))
A("v_max3_f32 v%d, v%d, v%d, v%d" % (m_, m_, MLR + 10, MLR + 12))
A("v_max_f32 v%d, v%d, v%d" % (m_, m_, MLR + 14))
for sp in range(8):
    A("v_sub_f32 v%d, v%d, v%d" % (MLR + 2 * sp, MLR + 2 * sp, m_))
    A("v_mul_f32 v%d, s%d, v%d" % (MLR + 2 * sp, sLOG2E, MLR + 2 * sp))
for sp in range(8): A("v_exp_f32 v%d, v%d" % (MLR + 2 * sp, MLR + 2 * sp))
nop(1)
A("v_mul_f32 v%d, v%d, v%d" % (s_, MLR, MLR + 1))
A("v_mul_f32 v%d, v%d, v%d" % (t_, MLR, OG))
A("v_mul_f32 v%d, v%d, v%d" % (u_, MLR, OG + 1))
for sp in range(1, 8):
    A("v_fmac_f32 v%d, v%d, v%d" % (s_, MLR + 2 * sp, MLR + 2 * sp + 1))
    A("v_fmac_f32 v%d, v%d, v%d" % (t_, MLR + 2 * sp, OG + 2 * sp))
    A("v_fmac_f32 v%d, v%d, v%d" % (u_, MLR + 2 * sp, OG + 2 * sp + 1))
A("v_rcp_f32 v%d, v%d" % (r_, s_)); nop(1)
A("v_mul_f32 v%d, v%d, v%d" % (t_, t_, r_))
A("v_mul_f32 v%d, v%d, v%d" % (u_, u_, r_))
A("v_cvt_pk_bf16_f32 v%d, v%d, v%d" % (t_, t_, u_))
A("v_lshlrev_b32 v%d, 2, v2" % vA)
A("s_lshl_b32 s%d, s%d, 8" % (sT0, sWAVE))
A("v_add_u32 v%d, s%d, v%d" % (vA, sT0, vA))
A("ds_write_b32 v%d, v%d offset:%d" % (vA, t_, OL))
barrier()
C("phase E: wo half tile")
A("v_and_b32 v%d, 7, v3" % vB)
A("v_lshlrev_b32 v%d, 8, v%d" % (vB, vB))
A("v_lshl_add_u32 v%d, v4, 3, v%d" % (vB, vB))
A("s_lshl_b32 s%d, s%d, 5" % (sT0, sWAVE))
A("v_add_u32 v%d, s%d, v%d" % (vB, sT0, vB))
A("ds_read_b64 %s, v%d offset:%d" % (vr(AF, 2), vB, OL))
A("v_add_u32 v%d, %d, v%d" % (vA, TB, vC))
A("s_waitcnt lgkmcnt(0)")
tile_mfma(WOR, 4, AF, PACC, TMP)
tile_store(PACC, vA, 0xffffffff, 0)
barrier()
A("s_endpgm")

LBL("L_service")
C("---------------- service wave ----------------")
R0 = 16
vL4 = 5; vL16 = 6; vT = 7; vT2 = 8; vX = 9
stamp(0)
A("v_mov_b32 v%d, 0" % vT)
A("buffer_load_dword v%d, v%d, %s, 0 offen sc1" % (vT2, vT, sr(rWS, 4)))
A("s_lshr_b32 s%d, s%d, 5" % (sT0, sWG))
A("s_lshl_b32 s%d, s%d, 11" % (sT0, sT0))
A("s_and_b32 s%d, s%d, 7" % (sT1, sWG))
A("s_lshl_b32 s%d, s%d, 8" % (sT1, sT1))
A("s_add_u32 s%d, s%d, s%d" % (sT0, sT0, sT1))
A("s_lshr_b32 s%d, s%d, 3" % (sT1, sWG))
A("s_and_b32 s%d, s%d, 3" % (sT1, sT1))
A("s_lshl_b32 s%d, s%d, 6" % (sT1, sT1))
sOUTOFF = sA0 + 15
A("s_add_u32 s%d, s%d, s%d" % (sOUTOFF, sT0, sT1))
A("v_and_b32 v%d, 31, v2" % vL4)
A("v_lshlrev_b32 v%d, 1, v%d" % (vL4, vL4))
A("buffer_load_ushort v%d, v%d, %s, s%d offen" % (vX, vL4, sr(rX, 4), sOUTOFF))
A("v_lshlrev_b32 v%d, 2, v2" % vL4)
A("v_lshlrev_b32 v%d, 4, v2" % vL16)
A("s_waitcnt vmcnt(0)")
A("v_readfirstlane_b32 s%d, v%d" % (sTAG, vT2))
A("s_add_u32 s%d, s%d, 0x9e3779b9" % (sTAG, sTAG))

def reduce_tiles(T, nslots, stride, ncols):
    nh = ncols // 64
    A("v_lshrrev_b32 v%d, 3, v2" % vT)
    A("v_lshlrev_b32 v%d, 4, v%d" % (vT, vT))
    A("v_lshl_add_u32 v%d, v2, 5, v%d" % (vT, vT))
    A("v_add_u32 v%d, %d, v%d" % (vT, T, vT))
    ACCS = R0 + 128
    for hh in range(nh):
        for grp in range(0, nslots, 8):
            for sl in range(8):
                off = (grp + sl) * stride + hh * 2176
                A("ds_read_b128 %s, v%d offset:%d" % (vr(R0 + 8 * sl, 4), vT, off))
                A("ds_read_b128 %s, v%d offset:%d" % (vr(R0 + 8 * sl + 4, 4), vT, off + 16))
            for sl in range(8):
                A("s_waitcnt lgkmcnt(%d)" % (14 - 2 * sl))
                for b in range(8):
                    if grp == 0 and sl == 0:
                        A("v_mov_b32 v%d, v%d" % (ACCS + 8 * hh + b, R0 + b))
                    else:
                        A("v_add_f32 v%d, v%d, v%d" % (ACCS + 8 * hh + b, ACCS + 8 * hh + b, R0 + 8 * sl + b))
    for hh in range(nh):
        for b in range(8):
            A("ds_write_b32 v%d, v%d offset:%d" % (vL4, ACCS + 8 * hh + b, TR + b * ncols * 4 + hh * 256))
    A("s_waitcnt lgkmcnt(0)")
    nq = ncols * 8 // 4 // 64
    for t in range(nq):
        A("ds_read_b128 %s, v%d offset:%d" % (vr(R0 + 4 * t, 4), vL16, TR + t * 1024))
    A("s_waitcnt lgkmcnt(0)")
    return nq

def flag_store(soff_reg):
    A("s_waitcnt vmcnt(0)")
    A("v_mov_b32 v%d, s%d" % (vT, sTAG)); A("v_mov_b32 v%d, 0" % vT2)
    A("s_mov_b64 exec, 1")
    A("buffer_store_dword v%d, v%d, %s, s%d offen sc1" % (vT, vT2, sr(rWS, 4), soff_reg))
    A("s_mov_b64 exec, -1")

npoll = [0]
def poll(soff_reg, nflags):
    n = npoll[0]; npoll[0] += 1
    A("v_and_b32 v%d, %d, v2" % (vT, nflags - 1))
    A("v_lshlrev_b32 v%d, 2, v%d" % (vT, vT))
    A("s_mov_b32 s%d, 400000" % sCNT)
    LBL("L_poll%d" % n)
    A("buffer_load_dword v%d, v%d, %s, s%d offen sc1" % (vT2, vT, sr(rWS, 4), soff_reg))
    A("s_waitcnt vmcnt(0)")
    A("v_cmp_ne_u32 vcc, s%d, v%d" % (sTAG, vT2))
    nop(1)
    A("s_cmp_eq_u64 vcc, 0")
    A("s_cbranch_scc1 L_pollok%d" % n)
    A("s_sleep 2")
    A("s_sub_u32 s%d, s%d, 1" % (sCNT, sCNT))
    A("s_cmp_lg_u32 s%d, 0" % sCNT)
    A("s_cbranch_scc1 L_poll%d" % n)
    LBL("L_pollok%d" % n)

A("s_barrier")
A("s_barrier")
stamp(1)
C("S2: reduce + publish q partial")
nq = reduce_tiles(TA, 16, 2176, 64)
A("v_lshrrev_b32 v%d, 4, v2" % vT)
A("v_lshlrev_b32 v%d, 14, v%d" % (vT, vT))
A("v_lshl_add_u32 v%d, v3, 4, v%d" % (vT, vT))
A("s_lshr_b32 s%d, s%d, 6" % (sT0, sWG))
A("s_lshl_b32 s%d, s%d, 17" % (sT1, sT0))
A("s_and_b32 s%d, s%d, 63" % (sT2, sWG))
A("s_lshl_b32 s%d, s%d, 8" % (sT3, sT2))
A("s_add_u32 s%d, s%d, s%d" % (sT1, sT1, sT3))
A("s_add_u32 s%d, s%d, 0x%x" % (sA0, sT1, WS_Q))
A("s_add_u32 s%d, s%d, 0x10000" % (sA0 + 1, sA0))
for t in range(2):
    A("buffer_store_dwordx4 %s, v%d, %s, s%d offen sc1" % (vr(R0 + 4 * t, 4), vT, sr(rWS, 4), sA0 + t))
A("s_lshl_b32 s%d, s%d, 2" % (sT3, sT2))
A("s_add_u32 s%d, s%d, s%d" % (sT3, sT3, sT0))
A("s_lshl_b32 s%d, s%d, 2" % (sT3, sT3))
A("s_add_u32 s%d, s%d, 0x%x" % (sA0 + 2, sT3, WS_FA))
flag_store(sA0 + 2)
stamp(2)
A("s_barrier")
C("S3: reduce + publish g/u partial")
A("s_cmp_ge_u32 s%d, 224" % sWG)
A("s_cbranch_scc1 L_skipgu")
nq = reduce_tiles(TB, 8, 4352, 128)
A("v_lshrrev_b32 v%d, 5, v2" % vT)
A("v_mul_u32_u24 v%d, 14336, v%d" % (vT, vT))
A("v_and_b32 v%d, 31, v2" % vT2)
A("v_lshl_add_u32 v%d, v%d, 4, v%d" % (vT, vT2, vT))
A("s_and_b32 s%d, s%d, 1" % (sT0, sWG))
A("s_lshr_b32 s%d, s%d, 1" % (sT1, sWG))
A("s_and_b32 s%d, s%d, 3" % (sT2, sT1))
A("s_lshr_b32 s%d, s%d, 2" % (sT3, sT1))
A("s_lshl_b32 s%d, s%d, 2" % (sT4, sT0))
A("s_add_u32 s%d, s%d, s%d" % (sT4, sT4, sT2))
A("s_mul_i32 s%d, s%d, %d" % (sT5, sT4, 8 * 14336))
A("s_lshl_b32 s%d, s%d, 9" % (sT6, sT3))
A("s_add_u32 s%d, s%d, s%d" % (sT5, sT5, sT6))
A("s_add_u32 s%d, s%d, 0x%x" % (sA0, sT5, WS_GU))
for t in range(1, 4): A("s_add_u32 s%d, s%d, %d" % (sA0 + t, sA0, t * 2 * 14336))
for t in range(4):
    A("buffer_store_dwordx4 %s, v%d, %s, s%d offen sc1" % (vr(R0 + 4 * t, 4), vT, sr(rWS, 4), sA0 + t))
A("s_lshl_b32 s%d, s%d, 3" % (sT5, sT3))
A("s_add_u32 s%d, s%d, s%d" % (sT5, sT5, sT4))
A("s_lshl_b32 s%d, s%d, 2" % (sT5, sT5))
A("s_add_u32 s%d, s%d, 0x%x" % (sA0 + 4, sT5, WS_FB))
flag_store(sA0 + 4)
LBL("L_skipgu")
stamp(3)
C("S4: wait q, gather, bf16 -> QL")
A("s_lshr_b32 s%d, s%d, 3" % (sT0, sWG))
A("s_and_b32 s%d, s%d, 3" % (sT0, sT0))
A("s_lshl_b32 s%d, s%d, 8" % (sT1, sT0))
A("s_add_u32 s%d, s%d, 0x%x" % (sA0, sT1, WS_FA))
poll(sA0, 64)
stamp(4)
A("s_lshr_b32 s%d, s%d, 5" % (sT1, sWG))
A("s_lshl_b32 s%d, s%d, 14" % (sT1, sT1))
A("s_lshl_b32 s%d, s%d, 12" % (sT0, sT0))
A("s_add_u32 s%d, s%d, s%d" % (sT1, sT1, sT0))
A("s_add_u32 s%d, s%d, 0x%x" % (sA0, sT1, WS_Q))
for ks in range(1, 4): A("s_add_u32 s%d, s%d, %d" % (sA0 + ks, sA0, ks * 0x20000))
for ks in range(4):
    for t in range(4):
        A("buffer_load_dwordx4 %s, v%d, %s, s%d offen offset:%d sc1" % (vr(R0 + 16 * ks + 4 * t, 4), vL16, sr(rWS, 4), sA0 + ks, 1024 * t))
A("s_waitcnt vmcnt(0)")
for ks in range(1, 4):
    for i in range(16): A("v_add_f32 v%d, v%d, v%d" % (R0 + i, R0 + i, R0 + 16 * ks + i))
for i in range(8): A("v_cvt_pk_bf16_f32 v%d, v%d, v%d" % (R0 + 64 + i, R0 + 2 * i, R0 + 2 * i + 1))
A("v_lshlrev_b32 v%d, 3, v2" % vT)
for t in range(4): A("ds_write_b64 v%d, %s offset:%d" % (vT, vr(R0 + 64 + 2 * t, 2), QL + 512 * t))
barrier()
stamp(5)
A("s_barrier")
C("S5: wait g/u, gather, h -> HL")
A("s_lshr_b32 s%d, s%d, 3" % (sT0, sWG))
A("s_mul_i32 s%d, s%d, 112" % (sT1, sT0))
A("s_lshr_b32 s%d, s%d, 7" % (sT2, sT1))
A("s_min_u32 s%d, s%d, 26" % (sT2, sT2))
A("s_lshl_b32 s%d, s%d, 5" % (sT2, sT2))
A("s_add_u32 s%d, s%d, 0x%x" % (sA0, sT2, WS_FB))
poll(sA0, 16)
A("v_lshrrev_b32 v%d, 3, v2" % vT)
A("v_mul_u32_u24 v%d, 14336, v%d" % (vT, vT))
A("v_and_b32 v%d, 7, v2" % vT2)
A("v_lshl_add_u32 v%d, v%d, 4, v%d" % (vT, vT2, vT))
A("s_lshl_b32 s%d, s%d, 2" % (sT1, sT1))
A("s_add_u32 s%d, s%d, 0x%x" % (sA0, sT1, WS_GU))
for m in range(1, 8): A("s_add_u32 s%d, s%d, %d" % (sA0 + m, sA0, m * 8 * 14336))
GS = R0 + 64
for mat in range(2):
    for ks in range(4):
        for t in range(4):
            A("buffer_load_dwordx4 %s, v%d, %s, s%d offen offset:%d sc1" % (vr(R0 + 16 * ks + 4 * t, 4), vT, sr(rWS, 4), sA0 + 4 * mat + ks, 128 * t))
    A("s_waitcnt vmcnt(0)")
    for i in range(16):
        A("v_add_f32 v%d, v%d, v%d" % (GS + 16 * mat + i, R0 + i, R0 + 16 + i))
        A("v_add_f32 v%d, v%d, v%d" % (R0 + 32 + i, R0 + 32 + i, R0 + 48 + i))
        A("v_add_f32 v%d, v%d, v%d" % (GS + 16 * mat + i, GS + 16 * mat + i, R0 + 32 + i))
for q in range(16): bf16r_pair(GS + 2 * q, GS + 2 * q + 1, vT2)
for i in range(16): A("v_mul_f32 v%d, s%d, v%d" % (R0 + i, sLOG2E, GS + i))
for i in range(16): A("v_exp_f32 v%d, -v%d" % (R0 + i, R0 + i))
nop(1)
for i in range(16): A("v_add_f32 v%d, 1.0, v%d" % (R0 + i, R0 + i))
for i in range(16): A("v_rcp_f32 v%d, v%d" % (R0 + i, R0 + i))
nop(1)
for q in range(8): bf16r_pair(R0 + 2 * q, R0 + 2 * q + 1, vT2)
for i in range(16): A("v_mul_f32 v%d, v%d, v%d" % (R0 + i, R0 + i, GS + 16 + i))
for q in range(8): A("v_cvt_pk_bf16_f32 v%d, v%d, v%d" % (R0 + 32 + q, R0 + 2 * q, R0 + 2 * q + 1))
A("v_lshrrev_b32 v%d, 3, v2" % vT)
A("v_lshlrev_b32 v%d, 8, v%d" % (vT, vT))
A("v_and_b32 v%d, 7, v2" % vT2)
A("v_lshl_add_u32 v%d, v%d, 3, v%d" % (vT, vT2, vT))
A("v_cmp_gt_u32 vcc, 4, v%d" % vT2)
nop(2)
A("v_cndmask_b32 v%d, 0, v%d, vcc" % (R0 + 38, R0 + 38))
A("v_cndmask_b32 v%d, 0, v%d, vcc" % (R0 + 39, R0 + 39))
for t in range(4): A("ds_write_b64 v%d, %s offset:%d" % (vT, vr(R0 + 32 + 2 * t, 2), HL + 64 * t))
stamp(6)
barrier()
stamp(7)
C("S6: reduce + publish attention partial")
nq = reduce_tiles(TC, 8, 4352, 128)
A("s_lshl_b32 s%d, s%d, 12" % (sT0, sWG))
A("s_add_u32 s%d, s%d, 0x%x" % (sA0, sT0, WS_O))
for t in range(4):
    A("buffer_store_dwordx4 %s, v%d, %s, s%d offen offset:%d sc1" % (vr(R0 + 4 * t, 4), vL16, sr(rWS, 4), sA0, 1024 * t))
A("v_and_b32 v%d, 7, v2" % vT)
A("v_lshlrev_b32 v%d, 5, v%d" % (vT, vT))
for t in range(2):
    A("ds_read_b128 %s, v%d offset:%d" % (vr(R0 + 32 + 4 * t, 4), vT, MX + 16 * t))
    A("ds_read_b128 %s, v%d offset:%d" % (vr(R0 + 40 + 4 * t, 4), vT, LS + 16 * t))
A("s_waitcnt lgkmcnt(0)")
A("v_max3_f32 v%d, v%d, v%d, v%d" % (R0 + 48, R0 + 32, R0 + 33, R0 + 34))
A("v_max3_f32 v%d, v%d, v%d, v%d" % (R0 + 48, R0 + 48, R0 + 35, R0 + 36))
A("v_max3_f32 v%d, v%d, v%d, v%d" % (R0 + 48, R0 + 48, R0 + 37, R0 + 38))
A("v_max_f32 v%d, v%d, v%d" % (R0 + 48, R0 + 48, R0 + 39))
A("v_add_f32 v%d, v%d, v%d" % (R0 + 49, R0 + 40, R0 + 41))
for i in range(2, 8): A("v_add_f32 v%d, v%d, v%d" % (R0 + 49, R0 + 49, R0 + 40 + i))
A("v_lshlrev_b32 v%d, 1, v%d" % (vT, vT))
A("s_lshr_b32 s%d, s%d, 3" % (sT0, sWG))
A("s_lshl_b32 s%d, s%d, 9" % (sT0, sT0))
A("s_and_b32 s%d, s%d, 7" % (sT1, sWG))
A("s_lshl_b32 s%d, s%d, 3" % (sT1, sT1))
A("s_add_u32 s%d, s%d, s%d" % (sT0, sT0, sT1))
A("s_add_u32 s%d, s%d, 0x%x" % (sA0 + 1, sT0, WS_ML))
A("s_mov_b64 exec, 0xff")
A("buffer_store_dwordx2 %s, v%d, %s, s%d offen sc1" % (vr(R0 + 48, 2), vT, sr(rWS, 4), sA0 + 1))
A("s_mov_b64 exec, -1")
A("s_lshr_b32 s%d, s%d, 3" % (sT0, sWG))
A("s_and_b32 s%d, s%d, 3" % (sT0, sT0))
A("s_lshl_b32 s%d, s%d, 6" % (sT0, sT0))
A("s_lshr_b32 s%d, s%d, 5" % (sT1, sWG))
A("s_lshl_b32 s%d, s%d, 3" % (sT1, sT1))
A("s_add_u32 s%d, s%d, s%d" % (sT0, sT0, sT1))
A("s_and_b32 s%d, s%d, 7" % (sT1, sWG))
A("s_add_u32 s%d, s%d, s%d" % (sT0, sT0, sT1))
A("s_lshl_b32 s%d, s%d, 2" % (sT0, sT0))
A("s_add_u32 s%d, s%d, 0x%x" % (sA0 + 2, sT0, WS_FC))
flag_store(sA0 + 2)
stamp(8)
C("S7: wait attention partials of head group hkv = w>>6")
A("s_lshr_b32 s%d, s%d, 6" % (sT0, sWG))
A("s_lshl_b32 s%d, s%d, 8" % (sT0, sT0))
A("s_add_u32 s%d, s%d, 0x%x" % (sA0, sT0, WS_FC))
poll(sA0, 64)
stamp(9)
A("s_barrier")
A("s_barrier")
A("s_barrier")
stamp(10)
C("S8: reduce + publish d and s partials")
A("s_and_b32 s%d, s%d, 7" % (sT0, sWG))
A("s_lshl_b32 s%d, s%d, 5" % (sT0, sT0))
A("s_lshr_b32 s%d, s%d, 3" % (sT1, sWG))
A("s_add_u32 s%d, s%d, s%d" % (sT0, sT0, sT1))
A("s_lshl_b32 s%d, s%d, 12" % (sT2, sT0))
A("s_add_u32 s%d, s%d, 0x%x" % (sA0, sT2, WS_S))
A("s_add_u32 s%d, s%d, 0x%x" % (sA0 + 1, sT2, WS_D))
A("s_lshl_b32 s%d, s%d, 2" % (sT2, sT0))
A("s_add_u32 s%d, s%d, 0x%x" % (sA0 + 2, sT2, WS_FD))
nq = reduce_tiles(TB, 8, 4352, 128)
for t in range(4):
    A("buffer_store_dwordx4 %s, v%d, %s, s%d offen offset:%d sc1" % (vr(R0 + 4 * t, 4), vL16, sr(rWS, 4), sA0, 1024 * t))
nop(2)
nq = reduce_tiles(TA, 8, 4352, 128)
for t in range(4):
    A("buffer_store_dwordx4 %s, v%d, %s, s%d offen offset:%d sc1" % (vr(R0 + 4 * t, 4), vL16, sr(rWS, 4), sA0 + 1, 1024 * t))
flag_store(sA0 + 2)
stamp(11)
C("S9: wait column group, final")
A("s_and_b32 s%d, s%d, 7" % (sT0, sWG))
A("s_lshl_b32 s%d, s%d, 7" % (sT1, sT0))
A("s_add_u32 s%d, s%d, 0x%x" % (sA0, sT1, WS_FD))
poll(sA0, 32)
stamp(12)
A("v_lshrrev_b32 v%d, 5, v2" % vT)
A("v_lshlrev_b32 v%d, 21, v%d" % (vT, vT))
A("v_and_b32 v%d, 31, v2" % vT2)
A("v_lshl_add_u32 v%d, v%d, 2, v%d" % (vT, vT2, vT))
A("s_lshl_b32 s%d, s%d, 17" % (sT1, sT0))
A("s_lshr_b32 s%d, s%d, 5" % (sT2, sWG))
A("s_lshl_b32 s%d, s%d, 9" % (sT2, sT2))
A("s_add_u32 s%d, s%d, s%d" % (sT1, sT1, sT2))
A("s_lshr_b32 s%d, s%d, 3" % (sT2, sWG))
A("s_and_b32 s%d, s%d, 3" % (sT2, sT2))
A("s_lshl_b32 s%d, s%d, 7" % (sT2, sT2))
A("s_add_u32 s%d, s%d, s%d" % (sT1, sT1, sT2))
A("s_add_u32 s%d, s%d, 0x%x" % (sA0, sT1, WS_S))
for i in range(32):
    A("buffer_load_dword v%d, v%d, %s, s%d offen sc1" % (R0 + i, vT, sr(rWS, 4), sA0))
    if i < 31: A("s_add_u32 s%d, s%d, 4096" % (sA0, sA0))
A("s_waitcnt vmcnt(0)")
for st in (16, 8, 4, 2, 1):
    for i in range(st): A("v_add_f32 v%d, v%d, v%d" % (R0 + i, R0 + i, R0 + st + i))
bf16r(R0, vT2)
A("v_mul_f32 v%d, s%d, v%d" % (R0 + 1, sLOG2E, R0))
A("v_exp_f32 v%d, -v%d" % (R0 + 1, R0 + 1)); nop(1)
A("v_add_f32 v%d, 1.0, v%d" % (R0 + 1, R0 + 1))
A("v_rcp_f32 v%d, v%d" % (R0 + 1, R0 + 1)); nop(1)
A("v_mul_f32 v%d, v%d, v%d" % (R0 + 1, R0 + 1, R0))
bf16r(R0 + 1, vT2)
A("v_mov_b32 v%d, v%d" % (R0 + 2, R0 + 1)); nop(2)
A("v_permlane32_swap_b32 v%d, v%d" % (R0 + 1, R0 + 2)); nop(1)
A("v_mul_f32 v%d, v%d, v%d" % (R0, R0, R0 + 2))
bf16r(R0, vT2)
A("v_lshlrev_b32 v%d, 16, v%d" % (vX, vX))
A("v_add_f32 v%d, v%d, v%d" % (R0, R0, vX))
A("v_cvt_pk_bf16_f32 v%d, v%d, v%d" % (R0, R0, R0))
A("v_and_b32 v%d, 31, v2" % vT)
A("v_lshlrev_b32 v%d, 1, v%d" % (vT, vT))
A("s_mov_b32 exec_lo, -1"); A("s_mov_b32 exec_hi, 0")
A("buffer_store_short v%d, v%d, %s, s%d offen" % (R0, vT, sr(rOUT, 4), sOUTOFF))
A("s_mov_b64 exec, -1")
C("workgroup 0 advances the epoch word for the next launch")
A("s_cmp_lg_u32 s%d, 0" % sWG)
A("s_cbranch_scc1 L_noep")
A("s_mov_b32 s%d, 0" % sA0)
flag_store(sA0)
LBL("L_noep")
stamp(13)
LBL("L_done")
A("s_endpgm")
L.append('.section .rodata,"a"')
L.append(".p2align 6")
L.append(".amdhsa_kernel %s_kernel" % NAME)
L.append("  .amdhsa_next_free_vgpr 168")
L.append("  .amdhsa_next_free_sgpr 102")
L.append("  .amdhsa_accum_offset 168")
L.append("  .amdhsa_group_segment_fixed_size 0")
L.append("  .amdhsa_kernarg_size 96")
L.append("  .amdhsa_user_sgpr_count 2")
L.append("  .amdhsa_user_sgpr_kernarg_segment_ptr 1")
L.append("  .amdhsa_system_sgpr_workgroup_id_x 1")
L.append(".end_amdhsa_kernel")
print("\n".join(L))
```

```python
import sys, os
NAME = "recurrent_scan__gqa_block_cached__glu_gated_glu__decode"
STAMP = os.environ.get("STAMP", "0") == "1"
WIN = int(os.environ.get("WIN", "6"))
NT = " nt"
L = []
def A(s): L.append("  " + s)
def LBL(s): L.append(s + ":")
def C(s): L.append("  ; " + s)
def nop(n):
    while n > 0:
        k = min(n, 16); A("s_nop %d" % (k - 1)); n -= k
def vr(a, n=1): return "v%d" % a if n == 1 else "v[%d:%d]" % (a, a + n - 1)
def sr(a, n=1): return "s%d" % a if n == 1 else "s[%d:%d]" % (a, a + n - 1)

WS_E = 0x0
WS_FA = 0x1000; WS_FB = 0x2000
WS_Q = 0x100000
WS_GU = 0x200000
WS_O = 0x400000
WS_ML = 0x600000
WS_S = 0x800000
WS_D = 0xA00000
WS_SIZE = 0x1000000
XN = 0x0000; QL = 0x4000; HL = 0x4800; OL = 0x5000; MX = 0x5800; LS = 0x5900; TR = 0x6000
TA = 0x7000; TB = 0x10000; TC = 0x19000
LDS_SIZE = 0x22000
sWG = 2; sWAVE = 3
sSELLO = 4; sSELHI = 5; sTAG = 6; sT0 = 7; sT1 = 8; sT2 = 9; sT3 = 10; sT4 = 11; sT5 = 12; sT6 = 13; sT7 = 14; sCNT = 15
P = 16
pX, pK, pV, pWQ, pWO, pBX, pWG, pWU, pWD, pOUT, pDBG, pWS = [P + 2 * i for i in range(12)]
rX, rK, rV, rWQ, rGU, rWD, rWO, rWS, rOUT, rDBG = [40 + 4 * i for i in range(10)]
sA0 = 80
sLOG2E = 96; sSCALE = 97; sTM0 = 98

def srd(r, p, nbytes):
    A("s_mov_b32 s%d, s%d" % (r, p)); A("s_and_b32 s%d, s%d, 0xffff" % (r + 1, p + 1))
    A("s_mov_b32 s%d, 0x%x" % (r + 2, nbytes)); A("s_mov_b32 s%d, 0x20000" % (r + 3))

def stamp(slot):
    if not STAMP: return
    A("s_cmp_lg_u32 s%d, %d" % (sWG, int(os.environ.get("STAMPWG", "0"))))
    A("s_cbranch_scc1 L_st%d" % slot)
    A("s_memrealtime s[98:99]")
    A("s_waitcnt lgkmcnt(0)")
    A("v_mov_b32 v166, s98"); A("v_mov_b32 v167, %d" % (slot * 4))
    A("s_mov_b64 exec, 1")
    A("buffer_store_dword v166, v167, %s, 0 offen" % sr(rDBG, 4))
    A("s_mov_b64 exec, -1")
    LBL("L_st%d" % slot)

nws = [0]
def wstamp():
    if not STAMP: return
    A("s_memrealtime s[98:99]")
    A("s_waitcnt lgkmcnt(0)")
    A("s_mov_b32 s%d, s98" % (16 + nws[0])); nws[0] += 1
def wdump():
    if not STAMP: return
    A("s_cmp_lg_u32 s%d, %d" % (sWG, int(os.environ.get("STAMPWG", "0"))))
    A("s_cbranch_scc1 L_wd")
    A("s_cmp_lg_u32 s%d, %d" % (sWAVE, int(os.environ.get("STAMPWAVE", "0"))))
    A("s_cbranch_scc1 L_wd")
    A("s_mov_b64 exec, 1")
    for i in range(nws[0]):
        A("v_mov_b32 v8, s%d" % (16 + i)); A("v_mov_b32 v9, %d" % ((16 + i) * 4))
        A("buffer_store_dword v8, v9, %s, 0 offen" % sr(rDBG, 4))
        nop(2)
    A("s_mov_b64 exec, -1")
    LBL("L_wd")
def bf16r_pair(a, b, t):
    A("v_cvt_pk_bf16_f32 v%d, v%d, v%d" % (t, a, b))
    A("v_lshlrev_b32 v%d, 16, v%d" % (a, t))
    A("v_and_b32 v%d, 0xffff0000, v%d" % (b, t))
def bf16r(a, t):
    A("v_cvt_pk_bf16_f32 v%d, v%d, v%d" % (t, a, a))
    A("v_lshlrev_b32 v%d, 16, v%d" % (a, t))

def xlane_hi(op, x, ta, tb):
    for sw in ("v_permlane16_swap_b32", "v_permlane32_swap_b32"):
        A("v_mov_b32 v%d, v%d" % (ta, x)); A("v_mov_b32 v%d, v%d" % (tb, x)); nop(2)
        A("%s v%d, v%d" % (sw, ta, tb)); nop(1)
        A("%s v%d, v%d, v%d" % (op, x, ta, tb))
def xlane_row(op, x, t):
    for m in ("quad_perm:[1,0,3,2]", "quad_perm:[2,3,0,1]", "row_half_mirror", "row_mirror"):
        nop(2)
        A("%s_dpp v%d, v%d, v%d %s row_mask:0xf bank_mask:0xf" % (op, t, x, x, m))
        A("v_mov_b32 v%d, v%d" % (x, t))

def tile_mfma(rows, nrows, Areg, acc, tmp, first_zero=True):
    nb = nrows // 2
    def perms(j):
        t = tmp + 4 * (j & 1); q = j >> 1; sel = sSELHI if (j & 1) else sSELLO
        for p in range(nb):
            A("v_perm_b32 v%d, v%d, v%d, s%d" % (t + p, rows + 4 * (2 * p + 1) + q, rows + 4 * (2 * p) + q, sel))
    def mf(j):
        t = tmp + 4 * (j & 1)
        c = "0" if first_zero else vr(acc + 4 * j, 4)
        if nrows == 4:
            A("v_mfma_f32_16x16x16_bf16 %s, %s, %s, %s" % (vr(acc + 4 * j, 4), vr(Areg, 2), vr(t, 2), c))
        else:
            A("v_mfma_f32_16x16x32_bf16 %s, %s, %s, %s" % (vr(acc + 4 * j, 4), vr(Areg, 4), vr(t, 4), c))
    perms(0); perms(1)
    for j in range(8):
        mf(j)
        if j + 2 < 8: perms(j + 2)

def tile_store(acc, vaddr, lo, hi):
    nop(8)
    A("s_mov_b32 exec_lo, 0x%x" % lo); A("s_mov_b32 exec_hi, 0x%x" % hi)
    for j in range(8):
        A("ds_write_b128 v%d, %s offset:%d" % (vaddr, vr(acc + 4 * j, 4), j * 32))
    A("s_mov_b64 exec, -1")

def barrier():
    A("s_waitcnt lgkmcnt(0)"); A("s_barrier")

issued = [0]
def LD(text, windowed=True):
    if windowed and issued[0] >= WIN:
        A("s_waitcnt vmcnt(%d)" % (WIN - 1))
    A(text); issued[0] += 1
def NEED(n, extra=""):
    A("s_waitcnt vmcnt(%d)%s" % (issued[0] - n, extra))

L.append("; @launch grid=(256,1,1) block=(576,1,1) lds=%d" % LDS_SIZE)
L.append('.amdgcn_target "amdgcn-amd-amdhsa--gfx950"')
L.append(".text")
L.append(".globl %s_kernel" % NAME)
L.append(".p2align 8")
L.append(".type %s_kernel,@function" % NAME)
LBL("%s_kernel" % NAME)
A("s_cmp_ge_u32 s2, 256")
A("s_cbranch_scc1 L_done")
A("s_load_dwordx16 s[16:31], s[0:1], 0")
A("s_load_dwordx8 s[32:39], s[0:1], 64")
A("v_lshrrev_b32 v1, 6, v0")
A("v_and_b32 v2, 63, v0")
A("v_and_b32 v3, 15, v0")
A("v_readfirstlane_b32 s%d, v1" % sWAVE)
A("v_lshrrev_b32 v4, 4, v2")
A("s_mov_b32 s%d, 0x05040100" % sSELLO)
A("s_mov_b32 s%d, 0x07060302" % sSELHI)
A("s_mov_b32 s%d, 0x3fb8aa3b" % sLOG2E)
A("s_mov_b32 s%d, 0x3db504f3" % sSCALE)
A("s_waitcnt lgkmcnt(0)")
A("s_load_dword s%d, s[%d:%d], 0" % (sTAG, pWS, pWS + 1))
srd(rX, pX, 16384); srd(rK, pK, 33554432); srd(rV, pV, 33554432); srd(rWQ, pWQ, 8388608)
A("s_and_b32 s%d, s%d, 1" % (sT0, sWG))
A("s_cmp_eq_u32 s%d, 0" % sT0)
A("s_cselect_b32 s%d, s%d, s%d" % (rGU, pWG, pWU))
A("s_cselect_b32 s%d, s%d, s%d" % (rGU + 1, pWG + 1, pWU + 1))
A("s_and_b32 s%d, s%d, 0xffff" % (rGU + 1, rGU + 1))
A("s_mov_b32 s%d, 7340032" % (rGU + 2)); A("s_mov_b32 s%d, 0x20000" % (rGU + 3))
srd(rWD, pWD, 7340032); srd(rWO, pWO, 8388608); srd(rWS, pWS, WS_SIZE); srd(rOUT, pOUT, 16384); srd(rDBG, pDBG, 256)
A("s_cmp_eq_u32 s%d, 8" % sWAVE)
A("s_cbranch_scc1 L_service")

C("---------------- streaming wave ----------------")
KR = 16; WQR = 80; GUR = 96; VR_ = 80; ACC = 128; SC = 144; QF = 160; TMP = 8
DR = 16; WOR = 32; PACC = 48
XR = 144; XF = 152
vA = 5; vB = 6; vC = 7
vGU = 14; vKA = 15
vGU = 1; vKA = 0
A("v_lshlrev_b32 v%d, 4, v2" % vA)
A("s_lshl_b32 s%d, s%d, 11" % (sA0 + 14, sWAVE))
LD("buffer_load_dwordx4 %s, v%d, %s, s%d offen" % (vr(XR, 4), vA, sr(rX, 4), sA0 + 14))
LD("buffer_load_dwordx4 %s, v%d, %s, s%d offen offset:1024" % (vr(XR + 4, 4), vA, sr(rX, 4), sA0 + 14))
A("v_lshrrev_b32 v%d, 3, v3" % vB)
A("v_lshlrev_b32 v%d, 2, v%d" % (vB, vB))
A("v_add_u32 v%d, v%d, v4" % (vB, vB))
A("v_lshlrev_b32 v%d, 15, v%d" % (vB, vB))
A("v_and_b32 v%d, 7, v3" % vC)
A("v_lshl_add_u32 v%d, v%d, 4, v%d" % (vB, vC, vB))
A("s_lshr_b32 s%d, s%d, 6" % (sT0, sWG))
A("s_lshl_b32 s%d, s%d, 3" % (sT0, sT0))
A("s_add_u32 s%d, s%d, s%d" % (sT0, sT0, sWAVE))
A("s_lshl_b32 s%d, s%d, 18" % (sT0, sT0))
A("s_and_b32 s%d, s%d, 63" % (sT1, sWG))
A("s_lshl_b32 s%d, s%d, 7" % (sT1, sT1))
A("s_add_u32 s%d, s%d, s%d" % (sA0, sT0, sT1))
for i in range(1, 4): A("s_add_u32 s%d, s%d, %d" % (sA0 + i, sA0, i * 8192))
for i in range(4):
    LD("buffer_load_dwordx4 %s, v%d, %s, s%d offen%s" % (vr(WQR + 4 * i, 4), vB, sr(rWQ, 4), sA0 + i, NT), windowed=False)
A("v_mul_u32_u24 v%d, 57344, v4" % vGU)
A("v_lshl_add_u32 v%d, v3, 4, v%d" % (vGU, vGU))
A("s_lshr_b32 s%d, s%d, 1" % (sT0, sWG))
A("s_and_b32 s%d, s%d, 3" % (sT1, sT0))
A("s_lshr_b32 s%d, s%d, 2" % (sT2, sT0))
A("s_lshl_b32 s%d, s%d, 3" % (sT1, sT1))
A("s_add_u32 s%d, s%d, s%d" % (sT1, sT1, sWAVE))
A("s_mul_i32 s%d, s%d, %d" % (sT1, sT1, 32 * 7168))
A("s_lshl_b32 s%d, s%d, 8" % (sT2, sT2))
A("s_add_u32 s%d, s%d, s%d" % (sA0 + 4, sT1, sT2))
A("s_cmp_ge_u32 s%d, 224" % sWG)
A("s_cselect_b32 s%d, 7340032, s%d" % (sA0 + 4, sA0 + 4))
for i in range(1, 8): A("s_add_u32 s%d, s%d, %d" % (sA0 + 4 + i, sA0 + 4, i * 7168))
A("v_lshrrev_b32 v%d, 2, v3" % vKA)
A("v_lshlrev_b32 v%d, 3, v%d" % (vKA, vKA))
A("v_and_b32 v%d, 3, v3" % vC)
A("v_add_u32 v%d, v%d, v%d" % (vKA, vKA, vC))
A("v_lshlrev_b32 v%d, 8, v%d" % (vKA, vKA))
A("v_lshl_add_u32 v%d, v4, 4, v%d" % (vKA, vKA))
sKB = sA0 + 12
A("s_lshl_b32 s%d, s%d, 17" % (sKB, sWG))
A("s_lshl_b32 s%d, s%d, 14" % (sT0, sWAVE))
A("s_add_u32 s%d, s%d, s%d" % (sKB, sKB, sT0))
A("s_add_u32 s%d, s%d, 8192" % (sKB + 1, sKB))
gu_loads = ["buffer_load_dwordx4 %s, v%d, %s, s%d offen%s" % (vr(GUR + 4 * i, 4), vGU, sr(rGU, 4), sA0 + 4 + i, NT) for i in range(8)]
k_loads = ["buffer_load_dwordx4 %s, v%d, %s, s%d offen offset:%d%s" % (vr(KR + 16 * (2 * u + T) + 4 * d, 4), vKA, sr(rK, 4), sKB + u, T * 1024 + d * 64, NT)
           for u in range(2) for T in range(2) for d in range(4)]
pend = gu_loads + k_loads
def issue_until(done_n):
    while pend and issued[0] - (WIN - 1) < done_n + 0:
        LD(pend.pop(0))
EXTRA = int(os.environ.get("EXTRA", "2"))
def topup(n):
    for _ in range(n):
        if pend: LD(pend.pop(0), windowed=False)
issue_until(2); topup(EXTRA)
C("layernorm")
NEED(2)
wstamp()
for q in range(8):
    A("v_lshlrev_b32 v%d, 16, v%d" % (XF + 2 * q, XR + q))
    A("v_and_b32 v%d, 0xffff0000, v%d" % (XF + 2 * q + 1, XR + q))
s_ = 8; t_ = 9; u_ = 10; m_ = 11; r_ = 12; sd_ = 13
A("v_add_f32 v%d, v%d, v%d" % (s_, XF, XF + 1))
for i in range(2, 16): A("v_add_f32 v%d, v%d, v%d" % (s_, s_, XF + i))
xlane_row("v_add_f32", s_, t_); xlane_hi("v_add_f32", s_, t_, u_)
A("v_mul_f32 v%d, 0x3a800000, v%d" % (m_, s_))
A("v_mov_b32 v%d, 0" % s_)
for i in range(16):
    A("v_sub_f32 v%d, v%d, v%d" % (t_, XF + i, m_))
    A("v_fmac_f32 v%d, v%d, v%d" % (s_, t_, t_))
xlane_row("v_add_f32", s_, t_); xlane_hi("v_add_f32", s_, t_, u_)
A("v_mul_f32 v%d, 0x3a800000, v%d" % (s_, s_))
bf16r(m_, t_); bf16r(s_, t_)
A("v_add_f32 v%d, 0x3727c5ac, v%d" % (s_, s_)); bf16r(s_, t_)
A("v_sqrt_f32 v%d, v%d" % (sd_, s_)); nop(1); bf16r(sd_, t_)
A("v_rcp_f32 v%d, v%d" % (r_, sd_)); nop(1)
for i in range(16): A("v_sub_f32 v%d, v%d, v%d" % (XF + i, XF + i, m_))
for q in range(8): bf16r_pair(XF + 2 * q, XF + 2 * q + 1, t_)
for i in range(16):
    A("v_mul_f32 v%d, v%d, v%d" % (t_, XF + i, r_))
    A("v_fma_f32 v%d, -v%d, v%d, v%d" % (u_, t_, sd_, XF + i))
    A("v_fma_f32 v%d, v%d, v%d, v%d" % (XF + i, u_, r_, t_))
for q in range(8): A("v_cvt_pk_bf16_f32 v%d, v%d, v%d" % (XR + q, XF + 2 * q, XF + 2 * q + 1))
A("v_lshlrev_b32 v%d, 4, v2" % vA)
A("v_add_u32 v%d, s%d, v%d" % (vA, sA0 + 14, vA))
A("ds_write_b128 v%d, %s offset:%d" % (vA, vr(XR, 4), XN))
A("ds_write_b128 v%d, %s offset:%d" % (vA, vr(XR + 4, 4), XN + 1024))
wstamp()
barrier()
wstamp()
C("phase A: wq half tile (two k-sets in rows 0-7 / 8-15)")
AF = 160
A("v_and_b32 v%d, 7, v3" % vA)
A("v_lshlrev_b32 v%d, 11, v%d" % (vA, vA))
A("v_lshrrev_b32 v%d, 3, v3" % vB)
A("v_lshlrev_b32 v%d, 5, v%d" % (vB, vB))
A("v_lshl_add_u32 v%d, v4, 3, v%d" % (vB, vB))
A("v_add_u32 v%d, v%d, v%d" % (vB, vB, vA))
A("s_lshr_b32 s%d, s%d, 6" % (sT0, sWG))
A("s_lshl_b32 s%d, s%d, 3" % (sT0, sT0))
A("s_add_u32 s%d, s%d, s%d" % (sT0, sT0, sWAVE))
A("s_lshl_b32 s%d, s%d, 6" % (sT0, sT0))
A("v_add_u32 v%d, s%d, v%d" % (vB, sT0, vB))
A("ds_read_b64 %s, v%d offset:%d" % (vr(AF, 2), vB, XN))
A("v_lshl_add_u32 v%d, v4, 4, v%d" % (vB, vA))
A("s_lshr_b32 s%d, s%d, 1" % (sT0, sWG))
A("s_and_b32 s%d, s%d, 3" % (sT0, sT0))
A("s_lshl_b32 s%d, s%d, 3" % (sT0, sT0))
A("s_add_u32 s%d, s%d, s%d" % (sT0, sT0, sWAVE))
A("s_lshl_b32 s%d, s%d, 6" % (sT0, sT0))
A("v_add_u32 v%d, s%d, v%d" % (vB, sT0, vB))
A("ds_read_b128 %s, v%d offset:%d" % (vr(AF + 4, 4), vB, XN))
A("v_lshrrev_b32 v%d, 1, v4" % vA)
A("s_lshl_b32 s%d, s%d, 1" % (sT0, sWAVE))
A("v_add_u32 v%d, s%d, v%d" % (vA, sT0, vA))
A("v_mul_u32_u24 v%d, 2176, v%d" % (vA, vA))
A("v_and_b32 v%d, 7, v3" % vB)
A("v_mul_u32_u24 v%d, 272, v%d" % (vB, vB))
A("v_add_u32 v%d, v%d, v%d" % (vA, vA, vB))
A("v_and_b32 v%d, 1, v4" % vB)
A("v_lshl_add_u32 v%d, v%d, 4, v%d" % (vA, vB, vA))
A("v_add_u32 v%d, %d, v%d" % (vA, TA, vA))
A("v_mul_u32_u24 v%d, 272, v3" % vC)
A("v_lshl_add_u32 v%d, v4, 4, v%d" % (vC, vC))
A("s_mul_i32 s%d, s%d, 4352" % (sT0, sWAVE))
A("v_add_u32 v%d, s%d, v%d" % (vC, sT0, vC))
issue_until(6); topup(EXTRA)
NEED(6, " lgkmcnt(0)")
tile_mfma(WQR, 4, AF, ACC, TMP)
tile_store(ACC, vA, 0x00ff00ff, 0xff00ff00)
wstamp()
barrier()
wstamp()
C("phase B: gate/up tile")
A("v_add_u32 v%d, %d, v%d" % (vA, TB, vC))
issue_until(14); topup(EXTRA)
NEED(14)
tile_mfma(GUR, 8, AF + 4, ACC, TMP)
tile_store(ACC, vA, 0xffffffff, 0)
wstamp()
barrier()
A("v_lshlrev_b32 v%d, 11, v4" % vB)
A("v_lshl_add_u32 v%d, v3, 4, v%d" % (vB, vB))
pend += ["buffer_load_dwordx4 %s, v%d, %s, s%d offen offset:%d%s" % (vr(VR_ + 32 * u + 4 * e, 4), vB, sr(rV, 4), sKB + u, e * 256, NT)
         for u in range(2) for e in range(8)]
while pend: LD(pend.pop(0))
assert issued[0] == 46
wstamp()
A("s_barrier")
wstamp()
C("QK^T")
A("v_and_b32 v%d, 7, v3" % vA)
A("v_lshlrev_b32 v%d, 8, v%d" % (vA, vA))
A("v_lshl_add_u32 v%d, v4, 4, v%d" % (vA, vA))
A("ds_read_b128 %s, v%d offset:%d" % (vr(QF, 4), vA, QL))
A("ds_read_b128 %s, v%d offset:%d" % (vr(QF + 4, 4), vA, QL + 64))
NEED(30)
for d in range(4):
    qf = QF + 4 * (d & 1)
    A("s_waitcnt lgkmcnt(%d)" % (1 if d < 3 else 0))
    for t in range(4):
        c = "0" if d == 0 else vr(SC + 4 * t, 4)
        A("v_mfma_f32_16x16x32_bf16 %s, %s, %s, %s" % (vr(SC + 4 * t, 4), vr(KR + 16 * t + 4 * d, 4), vr(qf, 4), c))
    if d + 2 < 4:
        nop(4)
        A("ds_read_b128 %s, v%d offset:%d" % (vr(qf, 4), vA, QL + 64 * (d + 2)))
nop(8)
wstamp()
A("v_lshlrev_b32 v%d, 13, v4" % vB)
A("v_lshl_add_u32 v%d, v3, 4, v%d" % (vB, vB))
A("s_lshr_b32 s%d, s%d, 3" % (sT0, sWG))
A("s_and_b32 s%d, s%d, 7" % (sT1, sWG))
A("s_lshl_b32 s%d, s%d, 8" % (sT1, sT1))
A("s_lshl_b32 s%d, s%d, 15" % (sT2, sWAVE))
A("s_add_u32 s%d, s%d, s%d" % (sT1, sT1, sT2))
A("s_mul_i32 s%d, s%d, %d" % (sT3, sT0, 112 * 2048))
A("s_add_u32 s%d, s%d, s%d" % (sA0, sT3, sT1))
A("s_cmp_eq_u32 s%d, 7" % sWAVE)
A("s_cselect_b32 s%d, 7340032, s%d" % (sA0, sA0))
A("s_add_u32 s%d, s%d, 4096" % (sA0 + 1, sA0))
A("s_lshl_b32 s%d, s%d, 18" % (sT3, sT0))
A("s_add_u32 s%d, s%d, s%d" % (sA0 + 2, sT3, sT1))
A("s_add_u32 s%d, s%d, 4096" % (sA0 + 3, sA0 + 2))
dw_loads = ["buffer_load_dwordx4 %s, v%d, %s, s%d offen offset:%d%s" % (vr(DR + 4 * t, 4), vB, sr(rWD, 4), sA0 + (t >> 1), (t & 1) * 2048, NT) for t in range(4)]
dw_loads += ["buffer_load_dwordx4 %s, v%d, %s, s%d offen offset:%d%s" % (vr(WOR + 4 * t, 4), vB, sr(rWO, 4), sA0 + 2 + (t >> 1), (t & 1) * 2048, NT) for t in range(4)]
for t in range(4): LD(dw_loads[t], windowed=False)
C("scores: bf16 round, scale, bf16 round; max")
for q in range(8): bf16r_pair(SC + 2 * q, SC + 2 * q + 1, t_)
for i in range(16): A("v_mul_f32 v%d, s%d, v%d" % (SC + i, sSCALE, SC + i))
for q in range(8): bf16r_pair(SC + 2 * q, SC + 2 * q + 1, t_)
A("v_max3_f32 v%d, v%d, v%d, v%d" % (m_, SC, SC + 1, SC + 2))
for i in range(3, 15, 2): A("v_max3_f32 v%d, v%d, v%d, v%d" % (m_, m_, SC + i, SC + i + 1))
A("v_max_f32 v%d, v%d, v%d" % (m_, m_, SC + 15))
xlane_hi("v_max_f32", m_, t_, u_)
A("v_lshlrev_b32 v%d, 5, v3" % vA)
A("s_lshl_b32 s%d, s%d, 2" % (sT0, sWAVE))
A("v_add_u32 v%d, s%d, v%d" % (vA, sT0, vA))
A("s_mov_b64 exec, 0xff")
A("ds_write_b32 v%d, v%d offset:%d" % (vA, m_, MX))
A("s_mov_b64 exec, -1")
for t in range(4, 8): LD(dw_loads[t], windowed=False)
wstamp()
barrier()
wstamp()
A("v_and_b32 v%d, 7, v3" % vB)
A("v_lshlrev_b32 v%d, 5, v%d" % (vB, vB))
A("ds_read_b128 %s, v%d offset:%d" % (vr(QF, 4), vB, MX))
A("ds_read_b128 %s, v%d offset:%d" % (vr(QF + 4, 4), vB, MX + 16))
A("s_waitcnt lgkmcnt(0)")
A("v_max3_f32 v%d, v%d, v%d, v%d" % (m_, QF, QF + 1, QF + 2))
A("v_max3_f32 v%d, v%d, v%d, v%d" % (m_, m_, QF + 3, QF + 4))
A("v_max3_f32 v%d, v%d, v%d, v%d" % (m_, m_, QF + 5, QF + 6))
A("v_max_f32 v%d, v%d, v%d" % (m_, m_, QF + 7))
A("v_mul_f32 v%d, s%d, v%d" % (m_, sLOG2E, m_))
for i in range(16): A("v_fma_f32 v%d, v%d, s%d, -v%d" % (SC + i, SC + i, sLOG2E, m_))
for i in range(16): A("v_exp_f32 v%d, v%d" % (SC + i, SC + i))
nop(1)
A("v_add_f32 v%d, v%d, v%d" % (s_, SC, SC + 1))
for i in range(2, 16): A("v_add_f32 v%d, v%d, v%d" % (s_, s_, SC + i))
PF = QF
for q in range(8): A("v_cvt_pk_bf16_f32 v%d, v%d, v%d" % (PF + q, SC + 2 * q, SC + 2 * q + 1))
xlane_hi("v_add_f32", s_, t_, u_)
A("s_mov_b64 exec, 0xff")
A("ds_write_b32 v%d, v%d offset:%d" % (vA, s_, LS))
A("s_mov_b64 exec, -1")
A("s_add_u32 s%d, s%d, 0x9e3779b9" % (sTAG, sTAG))
C("PV")
wstamp()
NEED(38)
tile_mfma(VR_, 8, PF, PACC, TMP, True)
NEED(46)
tile_mfma(VR_ + 32, 8, PF + 4, PACC, TMP, False)
A("v_add_u32 v%d, %d, v%d" % (vA, TC, vC))
vRD = 1; vST = 0
A("s_lshl_b32 s%d, s%d, 4" % (sT0, sWAVE))
A("v_add_u32 v%d, s%d, v3" % (vB, sT0))
A("v_lshrrev_b32 v%d, 3, v%d" % (vRD, vB))
A("v_lshlrev_b32 v%d, 4, v%d" % (vRD, vRD))
A("v_lshl_add_u32 v%d, v%d, 5, v%d" % (vRD, vB, vRD))
A("v_and_b32 v%d, 1, v4" % vST)
A("v_lshl_add_u32 v%d, v%d, 4, v%d" % (vRD, vST, vRD))
A("v_lshrrev_b32 v%d, 5, v2" % t_)
A("v_mul_u32_u24 v%d, %d, v%d" % (t_, 4 * 4352, t_))
A("v_add_u32 v%d, v%d, v%d" % (vRD, vRD, t_))
A("v_lshlrev_b32 v%d, 12, v%d" % (vST, vST))
A("v_lshl_add_u32 v%d, v%d, 3, v%d" % (vST, vB, vST))
tile_store(PACC, vA, 0xffffffff, 0)
wstamp()
barrier()
wstamp()
RB = 80
def wave_reduce_store(T, soff):
    A("v_add_u32 v%d, %d, v%d" % (vA, T, vRD))
    for t in range(4):
        A("ds_read_b128 %s, v%d offset:%d" % (vr(RB + 4 * t, 4), vA, t * 4352))
    A("s_waitcnt lgkmcnt(0)")
    for r in range(4):
        A("v_add_f32 v%d, v%d, v%d" % (RB + r, RB + r, RB + 4 + r))
        A("v_add_f32 v%d, v%d, v%d" % (RB + 8 + r, RB + 8 + r, RB + 12 + r))
    for r in range(4):
        A("v_add_f32 v%d, v%d, v%d" % (RB + r, RB + r, RB + 8 + r))
        A("v_mov_b32 v%d, v%d" % (RB + 4 + r, RB + r)) if False else None
    for r in range(4): A("v_mov_b32 v%d, v%d" % (RB + 4 + r, RB + r))
    nop(2)
    for r in range(4): A("v_permlane32_swap_b32 v%d, v%d" % (RB + r, RB + 4 + r))
    nop(1)
    for r in range(4):
        A("v_add_f32 v%d, v%d, v%d" % (RB + 16 + 2 * r, RB + r, RB + 4 + r))
        A("v_mov_b32 v%d, s%d" % (RB + 17 + 2 * r, sTAG))
    A("s_mov_b32 exec_hi, 0")
    for r in range(4):
        LD("buffer_store_dwordx2 %s, v%d, %s, s%d offen offset:%d sc1" % (vr(RB + 16 + 2 * r, 2), vST, sr(rWS, 4), soff, 1024 * r), windowed=False)
    A("s_mov_b64 exec, -1")

C("publish attention partial (tagged)")
A("s_lshl_b32 s%d, s%d, 13" % (sT0, sWG))
A("s_add_u32 s%d, s%d, 0x%x" % (sA0 + 4, sT0, WS_O))
wave_reduce_store(TC, sA0 + 4)
C("phase D: down half tile")
A("v_and_b32 v%d, 7, v3" % vB)
A("v_lshlrev_b32 v%d, 8, v%d" % (vB, vB))
A("v_lshl_add_u32 v%d, v4, 3, v%d" % (vB, vB))
A("s_lshl_b32 s%d, s%d, 5" % (sT0, sWAVE))
A("v_add_u32 v%d, s%d, v%d" % (vB, sT0, vB))
A("ds_read_b64 %s, v%d offset:%d" % (vr(AF, 2), vB, HL))
A("v_add_u32 v%d, %d, v%d" % (vA, TA, vC))
NEED(50, " lgkmcnt(0)")
tile_mfma(DR, 4, AF, PACC, TMP)
tile_store(PACC, vA, 0xffffffff, 0)
wstamp()
barrier()
wstamp()
A("s_and_b32 s%d, s%d, 7" % (sT0, sWG))
A("s_lshl_b32 s%d, s%d, 5" % (sT0, sT0))
A("s_lshr_b32 s%d, s%d, 3" % (sT1, sWG))
A("s_add_u32 s%d, s%d, s%d" % (sT0, sT0, sT1))
A("s_lshl_b32 s%d, s%d, 13" % (sT0, sT0))
A("s_add_u32 s%d, s%d, 0x%x" % (sA0 + 10, sT0, WS_S))
A("s_add_u32 s%d, s%d, 0x%x" % (sA0 + 11, sT0, WS_D))
wave_reduce_store(TA, sA0 + 11)
C("poll-gather attention partials for batch = wave, head h = w>>3")
OG = 80; MLR = 112
A("v_lshlrev_b32 v%d, 4, v2" % vA)
A("s_lshr_b32 s%d, s%d, 6" % (sT0, sWG))
A("s_lshr_b32 s%d, s%d, 3" % (sT1, sWG))
A("s_and_b32 s%d, s%d, 7" % (sT1, sT1))
A("s_lshl_b32 s%d, s%d, 2" % (sT2, sWAVE))
A("s_add_u32 s%d, s%d, s%d" % (sT2, sT2, sT0))
A("s_lshl_b32 s%d, s%d, 16" % (sT3, sT2))
A("s_lshl_b32 s%d, s%d, 10" % (sT4, sT1))
A("s_add_u32 s%d, s%d, s%d" % (sT3, sT3, sT4))
A("s_add_u32 s%d, s%d, 0x%x" % (sA0, sT3, WS_O))
for sp in range(1, 8): A("s_add_u32 s%d, s%d, %d" % (sA0 + sp, sA0, sp * 8192))
A("s_lshl_b32 s%d, s%d, 10" % (sT3, sT2))
A("s_lshl_b32 s%d, s%d, 7" % (sT4, sT1))
A("s_add_u32 s%d, s%d, s%d" % (sT3, sT3, sT4))
A("s_add_u32 s%d, s%d, 0x%x" % (sA0 + 8, sT3, WS_ML))
A("v_mov_b32 v%d, 0" % vB)
A("s_mov_b32 s%d, 400000" % sCNT)
nop(2)
LBL("L_pollc")
for sp in range(8):
    A("buffer_load_dwordx4 %s, v%d, %s, s%d offen sc1" % (vr(OG + 4 * sp, 4), vA, sr(rWS, 4), sA0 + sp))
for sp in range(8):
    A("buffer_load_dwordx4 %s, v%d, %s, s%d offen offset:%d sc1" % (vr(MLR + 4 * sp, 4), vB, sr(rWS, 4), sA0 + 8, 16 * sp))
A("s_waitcnt vmcnt(0)")
tags = [OG + 2 * i + 1 for i in range(32)]
A("v_min3_u32 v%d, v%d, v%d, v%d" % (s_, tags[0], tags[1], tags[2]))
A("v_max3_u32 v%d, v%d, v%d, v%d" % (t_, tags[0], tags[1], tags[2]))
for i in range(3, 31, 2):
    A("v_min3_u32 v%d, v%d, v%d, v%d" % (s_, s_, tags[i], tags[i + 1]))
    A("v_max3_u32 v%d, v%d, v%d, v%d" % (t_, t_, tags[i], tags[i + 1]))
A("v_min_u32 v%d, v%d, v%d" % (s_, s_, tags[31]))
A("v_max_u32 v%d, v%d, v%d" % (t_, t_, tags[31]))
A("v_cmp_ne_u32 vcc, s%d, v%d" % (sTAG, s_))
A("v_cmp_ne_u32 s[%d:%d], s%d, v%d" % (sT6 - 1, sT6, sTAG, t_))
nop(1)
A("s_or_b64 vcc, vcc, s[%d:%d]" % (sT6 - 1, sT6))
A("s_cmp_eq_u64 vcc, 0")
A("s_cbranch_scc1 L_pollc_ok")
A("s_sub_u32 s%d, s%d, 1" % (sCNT, sCNT))
A("s_cmp_lg_u32 s%d, 0" % sCNT)
A("s_cbranch_scc1 L_pollc")
LBL("L_pollc_ok")
wstamp()
A("v_max3_f32 v%d, v%d, v%d, v%d" % (m_, MLR, MLR + 4, MLR + 8))
A("v_max3_f32 v%d, v%d, v%d, v%d" % (m_, m_, MLR + 12, MLR + 16))
A("v_max3_f32 v%d, v%d, v%d, v%d" % (m_, m_, MLR + 20, MLR + 24))
A("v_max_f32 v%d, v%d, v%d" % (m_, m_, MLR + 28))
for sp in range(8):
    A("v_sub_f32 v%d, v%d, v%d" % (MLR + 4 * sp, MLR + 4 * sp, m_))
    A("v_mul_f32 v%d, s%d, v%d" % (MLR + 4 * sp, sLOG2E, MLR + 4 * sp))
for sp in range(8): A("v_exp_f32 v%d, v%d" % (MLR + 4 * sp, MLR + 4 * sp))
nop(1)
A("v_mul_f32 v%d, v%d, v%d" % (s_, MLR, MLR + 2))
A("v_mul_f32 v%d, v%d, v%d" % (t_, MLR, OG))
A("v_mul_f32 v%d, v%d, v%d" % (u_, MLR, OG + 2))
for sp in range(1, 8):
    A("v_fmac_f32 v%d, v%d, v%d" % (s_, MLR + 4 * sp, MLR + 4 * sp + 2))
    A("v_fmac_f32 v%d, v%d, v%d" % (t_, MLR + 4 * sp, OG + 4 * sp))
    A("v_fmac_f32 v%d, v%d, v%d" % (u_, MLR + 4 * sp, OG + 4 * sp + 2))
A("v_rcp_f32 v%d, v%d" % (r_, s_)); nop(1)
A("v_mul_f32 v%d, v%d, v%d" % (t_, t_, r_))
A("v_mul_f32 v%d, v%d, v%d" % (u_, u_, r_))
A("v_cvt_pk_bf16_f32 v%d, v%d, v%d" % (t_, t_, u_))
A("v_lshlrev_b32 v%d, 2, v2" % vA)
A("s_lshl_b32 s%d, s%d, 8" % (sT0, sWAVE))
A("v_add_u32 v%d, s%d, v%d" % (vA, sT0, vA))
A("ds_write_b32 v%d, v%d offset:%d" % (vA, t_, OL))
A("v_and_b32 v%d, 7, v3" % vB)
A("v_lshlrev_b32 v%d, 8, v%d" % (vB, vB))
A("v_lshl_add_u32 v%d, v4, 3, v%d" % (vB, vB))
A("s_lshl_b32 s%d, s%d, 5" % (sT0, sWAVE))
A("v_add_u32 v%d, s%d, v%d" % (vB, sT0, vB))
A("v_add_u32 v%d, %d, v%d" % (vA, TB, vC))
barrier()
wstamp()
C("phase E: wo half tile")
A("ds_read_b64 %s, v%d offset:%d" % (vr(AF, 2), vB, OL))
A("s_waitcnt lgkmcnt(0)")
tile_mfma(WOR, 4, AF, PACC, TMP)
tile_store(PACC, vA, 0xffffffff, 0)
barrier()
wstamp()
wave_reduce_store(TB, sA0 + 10)
wstamp()
wdump()
A("s_endpgm")

LBL("L_service")
C("---------------- service wave ----------------")
R0 = 16
vL4 = 5; vL16 = 6; vT = 7; vT2 = 8; vX = 9
stamp(0)
A("s_lshr_b32 s%d, s%d, 5" % (sT0, sWG))
A("s_lshl_b32 s%d, s%d, 11" % (sT0, sT0))
A("s_and_b32 s%d, s%d, 7" % (sT1, sWG))
A("s_lshl_b32 s%d, s%d, 8" % (sT1, sT1))
A("s_add_u32 s%d, s%d, s%d" % (sT0, sT0, sT1))
A("s_lshr_b32 s%d, s%d, 3" % (sT1, sWG))
A("s_and_b32 s%d, s%d, 3" % (sT1, sT1))
A("s_lshl_b32 s%d, s%d, 6" % (sT1, sT1))
sOUTOFF = sA0 + 15
A("s_add_u32 s%d, s%d, s%d" % (sOUTOFF, sT0, sT1))
A("v_and_b32 v%d, 31, v2" % vL4)
A("v_lshlrev_b32 v%d, 1, v%d" % (vL4, vL4))
A("buffer_load_ushort v%d, v%d, %s, s%d offen" % (vX, vL4, sr(rX, 4), sOUTOFF))
A("v_lshlrev_b32 v%d, 2, v2" % vL4)
A("v_lshlrev_b32 v%d, 4, v2" % vL16)
A("s_waitcnt vmcnt(0) lgkmcnt(0)")
A("s_add_u32 s%d, s%d, 0x9e3779b9" % (sTAG, sTAG))

def reduce_tiles(T, nslots, stride, ncols):
    nh = ncols // 64
    A("v_lshrrev_b32 v%d, 3, v2" % vT)
    A("v_lshlrev_b32 v%d, 4, v%d" % (vT, vT))
    A("v_lshl_add_u32 v%d, v2, 5, v%d" % (vT, vT))
    A("v_add_u32 v%d, %d, v%d" % (vT, T, vT))
    ACCS = R0 + 128
    for hh in range(nh):
        for grp in range(0, nslots, 8):
            for sl in range(8):
                off = (grp + sl) * stride + hh * 2176
                A("ds_read_b128 %s, v%d offset:%d" % (vr(R0 + 8 * sl, 4), vT, off))
                A("ds_read_b128 %s, v%d offset:%d" % (vr(R0 + 8 * sl + 4, 4), vT, off + 16))
            for sl in range(8):
                A("s_waitcnt lgkmcnt(%d)" % (14 - 2 * sl))
                for b in range(8):
                    if grp == 0 and sl == 0:
                        A("v_mov_b32 v%d, v%d" % (ACCS + 8 * hh + b, R0 + b))
                    else:
                        A("v_add_f32 v%d, v%d, v%d" % (ACCS + 8 * hh + b, ACCS + 8 * hh + b, R0 + 8 * sl + b))
    for hh in range(nh):
        for b in range(8):
            A("ds_write_b32 v%d, v%d offset:%d" % (vL4, ACCS + 8 * hh + b, TR + b * ncols * 4 + hh * 256))
    A("s_waitcnt lgkmcnt(0)")
    nq = ncols * 8 // 4 // 64
    for t in range(nq):
        A("ds_read_b128 %s, v%d offset:%d" % (vr(R0 + 4 * t, 4), vL16, TR + t * 1024))
    A("s_waitcnt lgkmcnt(0)")
    return nq

def flag_store(soff_reg):
    A("s_waitcnt vmcnt(0)")
    A("v_mov_b32 v%d, s%d" % (vT, sTAG)); A("v_mov_b32 v%d, 0" % vT2)
    A("s_mov_b64 exec, 1")
    A("buffer_store_dword v%d, v%d, %s, s%d offen sc1" % (vT, vT2, sr(rWS, 4), soff_reg))
    A("s_mov_b64 exec, -1")

npoll = [0]
def poll(soff_reg, nflags):
    n = npoll[0]; npoll[0] += 1
    A("v_and_b32 v%d, %d, v2" % (vT, nflags - 1))
    A("v_lshlrev_b32 v%d, 2, v%d" % (vT, vT))
    A("s_mov_b32 s%d, 400000" % sCNT)
    LBL("L_poll%d" % n)
    A("buffer_load_dword v%d, v%d, %s, s%d offen sc1" % (vT2, vT, sr(rWS, 4), soff_reg))
    A("s_waitcnt vmcnt(0)")
    A("v_cmp_ne_u32 vcc, s%d, v%d" % (sTAG, vT2))
    nop(1)
    A("s_cmp_eq_u64 vcc, 0")
    A("s_cbranch_scc1 L_pollok%d" % n)
    A("s_sleep 2")
    A("s_sub_u32 s%d, s%d, 1" % (sCNT, sCNT))
    A("s_cmp_lg_u32 s%d, 0" % sCNT)
    A("s_cbranch_scc1 L_poll%d" % n)
    LBL("L_pollok%d" % n)

A("s_barrier")
A("s_barrier")
stamp(1)
C("S2: reduce + publish q partial")
nq = reduce_tiles(TA, 16, 2176, 64)
A("v_lshrrev_b32 v%d, 4, v2" % vT)
A("v_lshlrev_b32 v%d, 14, v%d" % (vT, vT))
A("v_lshl_add_u32 v%d, v3, 4, v%d" % (vT, vT))
A("s_lshr_b32 s%d, s%d, 6" % (sT0, sWG))
A("s_lshl_b32 s%d, s%d, 17" % (sT1, sT0))
A("s_and_b32 s%d, s%d, 63" % (sT2, sWG))
A("s_lshl_b32 s%d, s%d, 8" % (sT3, sT2))
A("s_add_u32 s%d, s%d, s%d" % (sT1, sT1, sT3))
A("s_add_u32 s%d, s%d, 0x%x" % (sA0, sT1, WS_Q))
A("s_add_u32 s%d, s%d, 0x10000" % (sA0 + 1, sA0))
for t in range(2):
    A("buffer_store_dwordx4 %s, v%d, %s, s%d offen sc1" % (vr(R0 + 4 * t, 4), vT, sr(rWS, 4), sA0 + t))
A("s_lshl_b32 s%d, s%d, 2" % (sT3, sT2))
A("s_add_u32 s%d, s%d, s%d" % (sT3, sT3, sT0))
A("s_lshl_b32 s%d, s%d, 2" % (sT3, sT3))
A("s_add_u32 s%d, s%d, 0x%x" % (sA0 + 2, sT3, WS_FA))
flag_store(sA0 + 2)
stamp(2)
A("s_barrier")
C("S3: reduce + publish g/u partial")
A("s_cmp_ge_u32 s%d, 224" % sWG)
A("s_cbranch_scc1 L_skipgu")
nq = reduce_tiles(TB, 8, 4352, 128)
A("v_lshrrev_b32 v%d, 5, v2" % vT)
A("v_mul_u32_u24 v%d, 14336, v%d" % (vT, vT))
A("v_and_b32 v%d, 31, v2" % vT2)
A("v_lshl_add_u32 v%d, v%d, 4, v%d" % (vT, vT2, vT))
A("s_and_b32 s%d, s%d, 1" % (sT0, sWG))
A("s_lshr_b32 s%d, s%d, 1" % (sT1, sWG))
A("s_and_b32 s%d, s%d, 3" % (sT2, sT1))
A("s_lshr_b32 s%d, s%d, 2" % (sT3, sT1))
A("s_lshl_b32 s%d, s%d, 2" % (sT4, sT0))
A("s_add_u32 s%d, s%d, s%d" % (sT4, sT4, sT2))
A("s_mul_i32 s%d, s%d, %d" % (sT5, sT4, 8 * 14336))
A("s_lshl_b32 s%d, s%d, 9" % (sT6, sT3))
A("s_add_u32 s%d, s%d, s%d" % (sT5, sT5, sT6))
A("s_add_u32 s%d, s%d, 0x%x" % (sA0, sT5, WS_GU))
for t in range(1, 4): A("s_add_u32 s%d, s%d, %d" % (sA0 + t, sA0, t * 2 * 14336))
for t in range(4):
    A("buffer_store_dwordx4 %s, v%d, %s, s%d offen sc1" % (vr(R0 + 4 * t, 4), vT, sr(rWS, 4), sA0 + t))
A("s_lshl_b32 s%d, s%d, 3" % (sT5, sT3))
A("s_add_u32 s%d, s%d, s%d" % (sT5, sT5, sT4))
A("s_lshl_b32 s%d, s%d, 2" % (sT5, sT5))
A("s_add_u32 s%d, s%d, 0x%x" % (sA0 + 4, sT5, WS_FB))
flag_store(sA0 + 4)
LBL("L_skipgu")
stamp(3)
C("S4: wait q, gather, bf16 -> QL")
A("s_lshr_b32 s%d, s%d, 3" % (sT0, sWG))
A("s_and_b32 s%d, s%d, 3" % (sT0, sT0))
A("s_lshl_b32 s%d, s%d, 8" % (sT1, sT0))
A("s_add_u32 s%d, s%d, 0x%x" % (sA0, sT1, WS_FA))
poll(sA0, 64)
stamp(4)
A("s_lshr_b32 s%d, s%d, 5" % (sT1, sWG))
A("s_lshl_b32 s%d, s%d, 14" % (sT1, sT1))
A("s_lshl_b32 s%d, s%d, 12" % (sT0, sT0))
A("s_add_u32 s%d, s%d, s%d" % (sT1, sT1, sT0))
A("s_add_u32 s%d, s%d, 0x%x" % (sA0, sT1, WS_Q))
for ks in range(1, 4): A("s_add_u32 s%d, s%d, %d" % (sA0 + ks, sA0, ks * 0x20000))
for ks in range(4):
    for t in range(4):
        A("buffer_load_dwordx4 %s, v%d, %s, s%d offen offset:%d sc1" % (vr(R0 + 16 * ks + 4 * t, 4), vL16, sr(rWS, 4), sA0 + ks, 1024 * t))
A("s_waitcnt vmcnt(0)")
for ks in range(1, 4):
    for i in range(16): A("v_add_f32 v%d, v%d, v%d" % (R0 + i, R0 + i, R0 + 16 * ks + i))
for i in range(8): A("v_cvt_pk_bf16_f32 v%d, v%d, v%d" % (R0 + 64 + i, R0 + 2 * i, R0 + 2 * i + 1))
A("v_lshlrev_b32 v%d, 3, v2" % vT)
for t in range(4): A("ds_write_b64 v%d, %s offset:%d" % (vT, vr(R0 + 64 + 2 * t, 2), QL + 512 * t))
stamp(5)
C("S5: wait g/u, gather, h -> HL")
A("s_lshr_b32 s%d, s%d, 3" % (sT0, sWG))
A("s_mul_i32 s%d, s%d, 112" % (sT1, sT0))
A("s_lshr_b32 s%d, s%d, 7" % (sT2, sT1))
A("s_min_u32 s%d, s%d, 26" % (sT2, sT2))
A("s_lshl_b32 s%d, s%d, 5" % (sT2, sT2))
A("s_add_u32 s%d, s%d, 0x%x" % (sA0, sT2, WS_FB))
poll(sA0, 16)
A("v_lshrrev_b32 v%d, 3, v2" % vT)
A("v_mul_u32_u24 v%d, 14336, v%d" % (vT, vT))
A("v_and_b32 v%d, 7, v2" % vT2)
A("v_lshl_add_u32 v%d, v%d, 4, v%d" % (vT, vT2, vT))
A("s_lshl_b32 s%d, s%d, 2" % (sT1, sT1))
A("s_add_u32 s%d, s%d, 0x%x" % (sA0, sT1, WS_GU))
for m in range(1, 8): A("s_add_u32 s%d, s%d, %d" % (sA0 + m, sA0, m * 8 * 14336))
GS = R0 + 128
for mat in range(2):
    for ks in range(4):
        for t in range(4):
            A("buffer_load_dwordx4 %s, v%d, %s, s%d offen offset:%d sc1" % (vr(R0 + 64 * mat + 16 * ks + 4 * t, 4), vT, sr(rWS, 4), sA0 + 4 * mat + ks, 128 * t))
for mat in range(2):
    A("s_waitcnt vmcnt(%d)" % (16 if mat == 0 else 0))
    b0 = R0 + 64 * mat
    for i in range(16):
        A("v_add_f32 v%d, v%d, v%d" % (b0 + i, b0 + i, b0 + 16 + i))
        A("v_add_f32 v%d, v%d, v%d" % (b0 + 32 + i, b0 + 32 + i, b0 + 48 + i))
        A("v_add_f32 v%d, v%d, v%d" % (b0 + i, b0 + i, b0 + 32 + i))
G_ = R0; U_ = R0 + 64; S_ = R0 + 16
for q in range(8): bf16r_pair(G_ + 2 * q, G_ + 2 * q + 1, vT2)
for q in range(8): bf16r_pair(U_ + 2 * q, U_ + 2 * q + 1, vT2)
for i in range(16): A("v_mul_f32 v%d, s%d, v%d" % (S_ + i, sLOG2E, G_ + i))
for i in range(16): A("v_exp_f32 v%d, -v%d" % (S_ + i, S_ + i))
nop(1)
for i in range(16): A("v_add_f32 v%d, 1.0, v%d" % (S_ + i, S_ + i))
for i in range(16): A("v_rcp_f32 v%d, v%d" % (S_ + i, S_ + i))
nop(1)
for q in range(8): bf16r_pair(S_ + 2 * q, S_ + 2 * q + 1, vT2)
for i in range(16): A("v_mul_f32 v%d, v%d, v%d" % (S_ + i, S_ + i, U_ + i))
H_ = R0 + 32
for q in range(8): A("v_cvt_pk_bf16_f32 v%d, v%d, v%d" % (H_ + q, S_ + 2 * q, S_ + 2 * q + 1))
A("v_lshrrev_b32 v%d, 3, v2" % vT)
A("v_lshlrev_b32 v%d, 8, v%d" % (vT, vT))
A("v_and_b32 v%d, 7, v2" % vT2)
A("v_lshl_add_u32 v%d, v%d, 3, v%d" % (vT, vT2, vT))
A("v_cmp_gt_u32 vcc, 4, v%d" % vT2)
nop(2)
A("v_cndmask_b32 v%d, 0, v%d, vcc" % (H_ + 6, H_ + 6))
A("v_cndmask_b32 v%d, 0, v%d, vcc" % (H_ + 7, H_ + 7))
for t in range(4): A("ds_write_b64 v%d, %s offset:%d" % (vT, vr(H_ + 2 * t, 2), HL + 64 * t))
stamp(6)
barrier()
A("s_barrier")
stamp(7)
A("s_barrier")
stamp(8)
C("S6: publish M, L (tagged)")
A("v_and_b32 v%d, 7, v2" % vT)
A("v_lshlrev_b32 v%d, 5, v%d" % (vT, vT))
for t in range(2):
    A("ds_read_b128 %s, v%d offset:%d" % (vr(R0 + 32 + 4 * t, 4), vT, MX + 16 * t))
    A("ds_read_b128 %s, v%d offset:%d" % (vr(R0 + 40 + 4 * t, 4), vT, LS + 16 * t))
A("s_waitcnt lgkmcnt(0)")
A("v_max3_f32 v%d, v%d, v%d, v%d" % (R0 + 48, R0 + 32, R0 + 33, R0 + 34))
A("v_max3_f32 v%d, v%d, v%d, v%d" % (R0 + 48, R0 + 48, R0 + 35, R0 + 36))
A("v_max3_f32 v%d, v%d, v%d, v%d" % (R0 + 48, R0 + 48, R0 + 37, R0 + 38))
A("v_max_f32 v%d, v%d, v%d" % (R0 + 48, R0 + 48, R0 + 39))
A("v_add_f32 v%d, v%d, v%d" % (R0 + 50, R0 + 40, R0 + 41))
for i in range(2, 8): A("v_add_f32 v%d, v%d, v%d" % (R0 + 50, R0 + 50, R0 + 40 + i))
A("v_mov_b32 v%d, s%d" % (R0 + 49, sTAG)); A("v_mov_b32 v%d, s%d" % (R0 + 51, sTAG))
A("v_lshlrev_b32 v%d, 2, v%d" % (vT, vT))
A("s_lshr_b32 s%d, s%d, 3" % (sT0, sWG))
A("s_lshl_b32 s%d, s%d, 10" % (sT0, sT0))
A("s_and_b32 s%d, s%d, 7" % (sT1, sWG))
A("s_lshl_b32 s%d, s%d, 4" % (sT1, sT1))
A("s_add_u32 s%d, s%d, s%d" % (sT0, sT0, sT1))
A("s_add_u32 s%d, s%d, 0x%x" % (sA0 + 1, sT0, WS_ML))
A("s_mov_b64 exec, 0xff")
A("buffer_store_dwordx4 %s, v%d, %s, s%d offen sc1" % (vr(R0 + 48, 4), vT, sr(rWS, 4), sA0 + 1))
A("s_mov_b64 exec, -1")
A("s_barrier")
A("s_barrier")
stamp(9)
A("s_barrier")
stamp(10)
C("S9: poll-gather column group partials, final")
A("v_lshrrev_b32 v%d, 5, v2" % vT)
A("v_lshlrev_b32 v%d, 21, v%d" % (vT, vT))
A("v_and_b32 v%d, 31, v2" % vT2)
A("v_lshl_add_u32 v%d, v%d, 3, v%d" % (vT, vT2, vT))
A("s_and_b32 s%d, s%d, 7" % (sT0, sWG))
A("s_lshl_b32 s%d, s%d, 18" % (sT1, sT0))
A("s_lshr_b32 s%d, s%d, 5" % (sT2, sWG))
A("s_lshl_b32 s%d, s%d, 10" % (sT2, sT2))
A("s_add_u32 s%d, s%d, s%d" % (sT1, sT1, sT2))
A("s_lshr_b32 s%d, s%d, 3" % (sT2, sWG))
A("s_and_b32 s%d, s%d, 3" % (sT2, sT2))
A("s_lshl_b32 s%d, s%d, 8" % (sT2, sT2))
A("s_add_u32 s%d, s%d, s%d" % (sT1, sT1, sT2))
A("s_add_u32 s%d, s%d, 0x%x" % (sA0 + 1, sT1, WS_S))
A("s_mov_b32 s%d, 400000" % sCNT)
LBL("L_polld")
A("s_mov_b32 s%d, s%d" % (sA0, sA0 + 1))
for i in range(32):
    A("buffer_load_dwordx2 %s, v%d, %s, s%d offen sc1" % (vr(R0 + 2 * i, 2), vT, sr(rWS, 4), sA0))
    if i < 31: A("s_add_u32 s%d, s%d, 8192" % (sA0, sA0))
A("s_waitcnt vmcnt(0)")
tags = [R0 + 2 * i + 1 for i in range(32)]
mn = R0 + 64; mx = R0 + 65
A("v_min3_u32 v%d, v%d, v%d, v%d" % (mn, tags[0], tags[1], tags[2]))
A("v_max3_u32 v%d, v%d, v%d, v%d" % (mx, tags[0], tags[1], tags[2]))
for i in range(3, 31, 2):
    A("v_min3_u32 v%d, v%d, v%d, v%d" % (mn, mn, tags[i], tags[i + 1]))
    A("v_max3_u32 v%d, v%d, v%d, v%d" % (mx, mx, tags[i], tags[i + 1]))
A("v_min_u32 v%d, v%d, v%d" % (mn, mn, tags[31]))
A("v_max_u32 v%d, v%d, v%d" % (mx, mx, tags[31]))
A("v_cmp_ne_u32 vcc, s%d, v%d" % (sTAG, mn))
A("v_cmp_ne_u32 s[%d:%d], s%d, v%d" % (sT6 - 1, sT6, sTAG, mx))
nop(1)
A("s_or_b64 vcc, vcc, s[%d:%d]" % (sT6 - 1, sT6))
A("s_cmp_eq_u64 vcc, 0")
A("s_cbranch_scc1 L_polld_ok")
A("s_sub_u32 s%d, s%d, 1" % (sCNT, sCNT))
A("s_cmp_lg_u32 s%d, 0" % sCNT)
A("s_cbranch_scc1 L_polld")
LBL("L_polld_ok")
stamp(12)
for st in (16, 8, 4, 2, 1):
    for i in range(st): A("v_add_f32 v%d, v%d, v%d" % (R0 + 2 * i, R0 + 2 * i, R0 + 2 * (st + i)))
bf16r(R0, vT2)
A("v_mul_f32 v%d, s%d, v%d" % (R0 + 1, sLOG2E, R0))
A("v_exp_f32 v%d, -v%d" % (R0 + 1, R0 + 1)); nop(1)
A("v_add_f32 v%d, 1.0, v%d" % (R0 + 1, R0 + 1))
A("v_rcp_f32 v%d, v%d" % (R0 + 1, R0 + 1)); nop(1)
A("v_mul_f32 v%d, v%d, v%d" % (R0 + 1, R0 + 1, R0))
bf16r(R0 + 1, vT2)
A("v_mov_b32 v%d, v%d" % (R0 + 2, R0 + 1)); nop(2)
A("v_permlane32_swap_b32 v%d, v%d" % (R0 + 1, R0 + 2)); nop(1)
A("v_mul_f32 v%d, v%d, v%d" % (R0, R0, R0 + 2))
bf16r(R0, vT2)
A("v_lshlrev_b32 v%d, 16, v%d" % (vX, vX))
A("v_add_f32 v%d, v%d, v%d" % (R0, R0, vX))
A("v_cvt_pk_bf16_f32 v%d, v%d, v%d" % (R0, R0, R0))
A("v_and_b32 v%d, 31, v2" % vT)
A("v_lshlrev_b32 v%d, 1, v%d" % (vT, vT))
A("s_mov_b32 exec_lo, -1"); A("s_mov_b32 exec_hi, 0")
A("buffer_store_short v%d, v%d, %s, s%d offen" % (R0, vT, sr(rOUT, 4), sOUTOFF))
A("s_mov_b64 exec, -1")
C("workgroup 0 advances the epoch word for the next launch")
A("s_cmp_lg_u32 s%d, 0" % sWG)
A("s_cbranch_scc1 L_noep")
A("s_mov_b32 s%d, 0" % sA0)
flag_store(sA0)
LBL("L_noep")
stamp(13)
LBL("L_done")
A("s_endpgm")
L.append('.section .rodata,"a"')
L.append(".p2align 6")
L.append(".amdhsa_kernel %s_kernel" % NAME)
L.append("  .amdhsa_next_free_vgpr 168")
L.append("  .amdhsa_next_free_sgpr 102")
L.append("  .amdhsa_accum_offset 168")
L.append("  .amdhsa_group_segment_fixed_size 0")
L.append("  .amdhsa_kernarg_size 96")
L.append("  .amdhsa_user_sgpr_count 2")
L.append("  .amdhsa_user_sgpr_kernarg_segment_ptr 1")
L.append("  .amdhsa_system_sgpr_workgroup_id_x 1")
L.append(".end_amdhsa_kernel")
print("\n".join(L))
```

```python
import sys, os
NAME = "recurrent_scan__gqa_block_cached__glu_gated_glu__decode"
STAMP = os.environ.get("STAMP", "0") == "1"
WIN = int(os.environ.get("WIN", "6"))
EXTRA = int(os.environ.get("EXTRA", "2"))
GPOS = int(os.environ.get("GPOS", "8"))
WIN2 = int(os.environ.get("WIN2", "6"))
GSC = os.environ.get("GSC", "")
TB4 = int(os.environ.get("TB4", "4"))
SKIP = int(os.environ.get("SKIP", "8"))
PRIO = os.environ.get("PRIO", "0")
NOPUB = os.environ.get("NOPUB", "0") == "1"
NOCHK = os.environ.get("NOCHK", "0") == "1"
NOGATH = os.environ.get("NOGATH", "0") == "1"
def prio(hi_half_prio, lbl):
    A("s_cmp_ge_u32 s%d, 4" % sWAVE)
    A("s_cbranch_scc1 %s_a" % lbl)
    A("s_setprio %d" % (1 - hi_half_prio))
    A("s_branch %s_b" % lbl)
    LBL("%s_a" % lbl)
    A("s_setprio %d" % hi_half_prio)
    LBL("%s_b" % lbl)
NT = " nt"
L = []
def A(s): L.append("  " + s)
def LBL(s): L.append(s + ":")
def C(s): L.append("  ; " + s)
def nop(n):
    while n > 0:
        k = min(n, 16); A("s_nop %d" % (k - 1)); n -= k
def vr(a, n=1): return "v%d" % a if n == 1 else "v[%d:%d]" % (a, a + n - 1)
def sr(a, n=1): return "s%d" % a if n == 1 else "s[%d:%d]" % (a, a + n - 1)

WS_Q = 0x100000
WS_GU = 0x200000
WS_O = 0x400000
WS_ML = 0x600000
WS_S = 0x800000
WS_D = 0xA00000
WS_SIZE = 0x1000000
XN = 0x0000; QL = 0x4000; HL = 0x4800; OL = 0x5000; MX = 0x5800; LS = 0x5900; FS = 0x6000
TA = 0x7000; TB = 0x10000; TC = 0x19000
LDS_SIZE = 0x22000
sWG = 2; sWAVE = 3
sSELLO = 4; sSELHI = 5; sTAG = 6; sT0 = 7; sT1 = 8; sT2 = 9; sT3 = 10; sT4 = 11; sT5 = 12; sT6 = 13; sOUTOFF = 14; sCNT = 15
P = 16
pX, pK, pV, pWQ, pWO, pBX, pWG, pWU, pWD, pOUT, pDBG, pWS = [P + 2 * i for i in range(12)]
rX, rK, rV, rWQ, rGU, rWD, rWO, rWS, rOUT, rDBG = [40 + 4 * i for i in range(10)]
sA0 = 80
sLOG2E = 96; sSCALE = 97; sMASK = 95; sLO = 76; sHI = 77

def srd(r, p, nbytes):
    A("s_mov_b32 s%d, s%d" % (r, p)); A("s_and_b32 s%d, s%d, 0xffff" % (r + 1, p + 1))
    A("s_mov_b32 s%d, 0x%x" % (r + 2, nbytes)); A("s_mov_b32 s%d, 0x20000" % (r + 3))
nws = [0]
def wstamp():
    if not STAMP: return
    A("s_memrealtime s[98:99]"); A("s_waitcnt lgkmcnt(0)")
    A("s_mov_b32 s%d, s98" % (16 + nws[0])); nws[0] += 1
def wdump():
    if not STAMP: return
    A("s_lshl_b32 s%d, s%d, 3" % (sT0, sWG)); A("s_add_u32 s%d, s%d, s%d" % (sT0, sT0, sWAVE)); A("s_lshl_b32 s%d, s%d, 7" % (sT0, sT0))
    A("s_add_u32 s%d, s%d, 0xC00000" % (sT0, sT0))
    A("s_mov_b64 exec, 1")
    for i in range(nws[0]):
        A("v_mov_b32 v8, s%d" % (16 + i)); A("v_mov_b32 v9, %d" % (i * 4))
        A("buffer_store_dword v8, v9, %s, s%d offen" % (sr(rWS, 4), sT0)); nop(2)
    A("v_mov_b32 v8, s%d" % sCNT); A("v_mov_b32 v9, 124")
    A("buffer_store_dword v8, v9, %s, s%d offen" % (sr(rWS, 4), sT0)); nop(2)
    A("s_mov_b64 exec, -1")
def bf16r_pair(a, b, t):
    A("v_cvt_pk_bf16_f32 v%d, v%d, v%d" % (t, a, b))
    A("v_lshlrev_b32 v%d, 16, v%d" % (a, t))
    A("v_and_b32 v%d, 0xffff0000, v%d" % (b, t))
def bf16r(a, t):
    A("v_cvt_pk_bf16_f32 v%d, v%d, v%d" % (t, a, a))
    A("v_lshlrev_b32 v%d, 16, v%d" % (a, t))
def xlane_hi(op, x, ta, tb):
    for sw in ("v_permlane16_swap_b32", "v_permlane32_swap_b32"):
        A("v_mov_b32 v%d, v%d" % (ta, x)); A("v_mov_b32 v%d, v%d" % (tb, x)); nop(2)
        A("%s v%d, v%d" % (sw, ta, tb)); nop(1)
        A("%s v%d, v%d, v%d" % (op, x, ta, tb))
def xadd4(x, tmp, swaps):
    for sw in swaps:
        for r in range(4): A("v_mov_b32 v%d, v%d" % (tmp + r, x + r))
        nop(2)
        for r in range(4): A("%s v%d, v%d" % (sw, x + r, tmp + r))
        nop(1)
        for r in range(4): A("v_add_f32 v%d, v%d, v%d" % (x + r, x + r, tmp + r))
P16 = "v_permlane16_swap_b32"; P32 = "v_permlane32_swap_b32"
def xlane_row(op, x, t):
    for m in ("quad_perm:[1,0,3,2]", "quad_perm:[2,3,0,1]", "row_half_mirror", "row_mirror"):
        nop(2)
        A("%s_dpp v%d, v%d, v%d %s row_mask:0xf bank_mask:0xf" % (op, t, x, x, m))
        A("v_mov_b32 v%d, v%d" % (x, t))
def tile_mfma(rows, nrows, Areg, acc, tmp, first_zero=True):
    nb = nrows // 2
    def perms(j):
        t = tmp + 4 * (j & 1); q = j >> 1; sel = sSELHI if (j & 1) else sSELLO
        for p in range(nb):
            A("v_perm_b32 v%d, v%d, v%d, s%d" % (t + p, rows + 4 * (2 * p + 1) + q, rows + 4 * (2 * p) + q, sel))
    def mf(j):
        t = tmp + 4 * (j & 1)
        c = "0" if first_zero else vr(acc + 4 * j, 4)
        if nrows == 4:
            A("v_mfma_f32_16x16x16_bf16 %s, %s, %s, %s" % (vr(acc + 4 * j, 4), vr(Areg, 2), vr(t, 2), c))
        else:
            A("v_mfma_f32_16x16x32_bf16 %s, %s, %s, %s" % (vr(acc + 4 * j, 4), vr(Areg, 4), vr(t, 4), c))
    perms(0); perms(1)
    for j in range(8):
        mf(j)
        if j + 2 < 8: perms(j + 2)
def tile_store(acc, vaddr, lo, hi):
    nop(8)
    A("s_mov_b32 exec_lo, 0x%x" % lo); A("s_mov_b32 exec_hi, 0x%x" % hi)
    for j in range(8):
        A("ds_write_b128 v%d, %s offset:%d" % (vaddr, vr(acc + 4 * j, 4), j * 32))
    A("s_mov_b64 exec, -1")
def barrier():
    A("s_waitcnt lgkmcnt(0)"); A("s_barrier")
vTB0 = 246; vTB1 = 247
def embed4(x):
    for r in range(4): A("v_and_or_b32 v%d, v%d, s%d, v%d" % (x + r, x + r, sMASK, vTB0 + (r & 1)))
def embcheck(quads, acc, t1, t2, okl):
    if NOCHK:
        A("s_branch %s" % okl); return
    first = True
    for q in quads:
        for h in (0, 2):
            A("v_xor_b32 v%d, v%d, v%d" % (t1, q + h, vTB0)); A("v_xor_b32 v%d, v%d, v%d" % (t2, q + h + 1, vTB1))
            if first: A("v_or_b32 v%d, v%d, v%d" % (acc, t1, t2)); first = False
            else: A("v_or3_b32 v%d, v%d, v%d, v%d" % (acc, acc, t1, t2))
    A("v_and_b32 v%d, 0xff, v%d" % (acc, acc))
    A("v_cmp_ne_u32 vcc, 0, v%d" % acc)
    nop(1)
    A("s_cmp_eq_u64 vcc, 0")
    A("s_cbranch_scc1 %s" % okl)
def tagcheck(tags, mn, mx, okl):
    if NOCHK:
        A("s_branch %s" % okl); return
    A("v_min3_u32 v%d, v%d, v%d, v%d" % (mn, tags[0], tags[1], tags[1]))
    A("v_max3_u32 v%d, v%d, v%d, v%d" % (mx, tags[0], tags[1], tags[1]))
    for i in range(2, len(tags), 2):
        A("v_min3_u32 v%d, v%d, v%d, v%d" % (mn, mn, tags[i], tags[i + 1]))
        A("v_max3_u32 v%d, v%d, v%d, v%d" % (mx, mx, tags[i], tags[i + 1]))
    A("v_cmp_ne_u32 vcc, s%d, v%d" % (sTAG, mn))
    A("v_cmp_ne_u32 s[%d:%d], s%d, v%d" % (sT5, sT6, sTAG, mx))
    nop(1)
    A("s_or_b64 vcc, vcc, s[%d:%d]" % (sT5, sT6))
    A("s_cmp_eq_u64 vcc, 0")
    A("s_cbranch_scc1 %s" % okl)
def bounded_retry(lbl):
    A("s_sub_u32 s%d, s%d, 1" % (sCNT, sCNT))
    A("s_cmp_lg_u32 s%d, 0" % sCNT)
    A("s_cbranch_scc1 %s" % lbl)

issued = [0]
idx = {}
def LD(text, windowed=True, name=None):
    global WIN
    if windowed and issued[0] >= WIN:
        A("s_waitcnt vmcnt(%d)" % (WIN - 1))
    A(text); issued[0] += 1
    if name: idx[name] = issued[0]
def NEED(name, extra=""):
    A("s_waitcnt vmcnt(%d)%s" % (min(63, issued[0] - idx[name]), extra))
pend = []
def pop_issue(windowed=True):
    n, t = pend.pop(0); LD(t, windowed, n)
def issue_until(name):
    while name not in idx: pop_issue()
    while pend and issued[0] - (WIN - 1) < idx[name]: pop_issue()
def topup(n):
    for _ in range(n):
        if pend: pop_issue(False)

L.append("; @launch grid=(256,1,1) block=(512,1,1) lds=%d" % LDS_SIZE)
L.append('.amdgcn_target "amdgcn-amd-amdhsa--gfx950"')
L.append(".text")
L.append(".globl %s_kernel" % NAME)
L.append(".p2align 8")
L.append(".type %s_kernel,@function" % NAME)
LBL("%s_kernel" % NAME)
A("s_cmp_ge_u32 s2, 256")
A("s_cbranch_scc1 L_done")
A("s_load_dwordx16 s[16:31], s[0:1], 0")
A("s_load_dwordx8 s[32:39], s[0:1], 64")
A("v_lshrrev_b32 v1, 6, v0")
A("v_and_b32 v2, 63, v0")
A("v_and_b32 v3, 15, v0")
A("v_readfirstlane_b32 s%d, v1" % sWAVE)
A("v_lshrrev_b32 v4, 4, v2")
A("s_mov_b32 s%d, 0x05040100" % sSELLO)
A("s_mov_b32 s%d, 0x07060302" % sSELHI)
A("s_mov_b32 s%d, 0x3fb8aa3b" % sLOG2E)
A("s_mov_b32 s%d, 0x3db504f3" % sSCALE)
A("s_mov_b32 s%d, 0xffffff00" % sMASK)
A("s_mov_b32 s%d, 400000" % sCNT)
A("s_waitcnt lgkmcnt(0)")
if STAMP: A("s_memrealtime s[100:101]")
A("s_load_dword s%d, s[%d:%d], 0" % (sTAG, pWS, pWS + 1))
srd(rX, pX, 16384); srd(rWQ, pWQ, 8388608)
if PRIO in ("1", "2"): prio(1, "L_pr0")

WR = 16; GR = 32; KR = 64; VR_ = 128; ACC = 192; SC = 224; QF = 240; TMP = 8
DR = 16; WOR = 32; QG = 224; HG = 48; XR = 192; XF = 200; AF = 240; vXO = 248
vA = 5; vB = 6; vC = 7; vGU = 1; vKA = 0
s_ = 8; t_ = 9; u_ = 10; m_ = 11; r_ = 12; sd_ = 13
vVA = 249; vDA = 250; vL16 = 251; vRD = 252; vST = 253; vAF = 254; vRD2 = 255
A("v_lshlrev_b32 v%d, 4, v2" % vL16)
A("s_lshl_b32 s%d, s%d, 11" % (sA0 + 14, sWAVE))
LD("buffer_load_dwordx4 %s, v%d, %s, s%d offen" % (vr(XR, 4), vL16, sr(rX, 4), sA0 + 14))
LD("buffer_load_dwordx4 %s, v%d, %s, s%d offen offset:1024" % (vr(XR + 4, 4), vL16, sr(rX, 4), sA0 + 14), name="X")
A("v_lshrrev_b32 v%d, 3, v3" % vB)
A("v_lshlrev_b32 v%d, 2, v%d" % (vB, vB))
A("v_add_u32 v%d, v%d, v4" % (vB, vB))
A("v_and_b32 v%d, 7, v3" % vC)
A("v_mul_u32_u24 v%d, 57344, v%d" % (vGU, vB))
A("v_lshl_add_u32 v%d, v%d, 4, v%d" % (vGU, vC, vGU))
A("v_lshlrev_b32 v%d, 15, v%d" % (vB, vB))
A("v_lshl_add_u32 v%d, v%d, 4, v%d" % (vB, vC, vB))
A("s_lshr_b32 s%d, s%d, 6" % (sT0, sWG))
A("s_lshl_b32 s%d, s%d, 3" % (sT0, sT0))
A("s_add_u32 s%d, s%d, s%d" % (sT0, sT0, sWAVE))
A("s_lshl_b32 s%d, s%d, 18" % (sT0, sT0))
A("s_and_b32 s%d, s%d, 63" % (sT1, sWG))
A("s_lshl_b32 s%d, s%d, 7" % (sT1, sT1))
A("s_add_u32 s%d, s%d, s%d" % (sA0, sT0, sT1))
for i in range(1, 4): A("s_add_u32 s%d, s%d, %d" % (sA0 + i, sA0, i * 8192))
for i in range(4):
    LD("buffer_load_dwordx4 %s, v%d, %s, s%d offen%s" % (vr(WR + 4 * i, 4), vB, sr(rWQ, 4), sA0 + i, NT), windowed=False, name="W%d" % i)
srd(rK, pK, 33554432); srd(rV, pV, 33554432)
A("s_and_b32 s%d, s%d, 1" % (sT0, sWG))
A("s_cmp_eq_u32 s%d, 0" % sT0)
A("s_cselect_b32 s%d, s%d, s%d" % (rGU, pWG, pWU))
A("s_cselect_b32 s%d, s%d, s%d" % (rGU + 1, pWG + 1, pWU + 1))
A("s_and_b32 s%d, s%d, 0xffff" % (rGU + 1, rGU + 1))
A("s_mov_b32 s%d, 7340032" % (rGU + 2)); A("s_mov_b32 s%d, 0x20000" % (rGU + 3))
srd(rWD, pWD, 7340032); srd(rWO, pWO, 8388608); srd(rWS, pWS, WS_SIZE); srd(rOUT, pOUT, 16384)
A("s_and_b32 s%d, s%d, 31" % (sLO, sWG))
A("s_lshr_b32 s%d, s%d, 5" % (sHI, sWG))
A("s_lshl_b32 s%d, s%d, 8" % (sT0, sHI))
A("s_lshl_b32 s%d, s%d, 3" % (sT1, sLO))
A("s_add_u32 s%d, s%d, s%d" % (sOUTOFF, sT0, sT1))
A("v_and_b32 v%d, 7, v2" % vC)
A("v_lshlrev_b32 v%d, 11, v%d" % (vC, vC))
A("v_bfe_u32 v%d, v2, 3, 2" % vA)
A("v_lshl_add_u32 v%d, v%d, 1, v%d" % (vC, vA, vC))
LD("buffer_load_ushort v%d, v%d, %s, s%d offen" % (vXO, vC, sr(rX, 4), sOUTOFF), windowed=False)
A("s_lshr_b32 s%d, s%d, 1" % (sT0, sWG))
A("s_and_b32 s%d, s%d, 1" % (sT1, sT0))
A("s_lshr_b32 s%d, s%d, 1" % (sT2, sT0))
A("s_lshl_b32 s%d, s%d, 3" % (sT1, sT1))
A("s_add_u32 s%d, s%d, s%d" % (sT1, sT1, sWAVE))
A("s_mul_i32 s%d, s%d, %d" % (sT1, sT1, 64 * 7168))
A("s_lshl_b32 s%d, s%d, 7" % (sT2, sT2))
A("s_add_u32 s%d, s%d, s%d" % (sA0 + 4, sT1, sT2))
A("s_cmp_ge_u32 s%d, 224" % sWG)
A("s_cselect_b32 s%d, 7340032, s%d" % (sA0 + 4, sA0 + 4))
for i in range(1, 8): A("s_add_u32 s%d, s%d, %d" % (sA0 + 4 + i, sA0 + 4, i * 7168))
A("v_lshrrev_b32 v%d, 2, v3" % vKA)
A("v_lshlrev_b32 v%d, 3, v%d" % (vKA, vKA))
A("v_and_b32 v%d, 3, v3" % vC)
A("v_add_u32 v%d, v%d, v%d" % (vKA, vKA, vC))
A("v_lshlrev_b32 v%d, 8, v%d" % (vKA, vKA))
A("v_lshl_add_u32 v%d, v4, 4, v%d" % (vKA, vKA))
sKB = sA0 + 12
A("s_lshl_b32 s%d, s%d, 20" % (sKB, sLO))
A("s_lshl_b32 s%d, s%d, 17" % (sT0, sHI))
A("s_add_u32 s%d, s%d, s%d" % (sKB, sKB, sT0))
A("s_lshl_b32 s%d, s%d, 14" % (sT0, sWAVE))
A("s_add_u32 s%d, s%d, s%d" % (sKB, sKB, sT0))
A("s_add_u32 s%d, s%d, 8192" % (sKB + 1, sKB))
A("v_lshlrev_b32 v%d, 11, v4" % vVA)
A("v_lshl_add_u32 v%d, v3, 4, v%d" % (vVA, vVA))
A("v_lshlrev_b32 v%d, 13, v4" % vDA)
A("v_lshl_add_u32 v%d, v3, 4, v%d" % (vDA, vDA))
pend += [("G%d" % i, "buffer_load_dwordx4 %s, v%d, %s, s%d offen%s" % (vr(GR + 4 * i, 4), vGU, sr(rGU, 4), sA0 + 4 + i, NT)) for i in range(8)]
pend += [("K%d" % (8 * u + 4 * T + d), "buffer_load_dwordx4 %s, v%d, %s, s%d offen offset:%d%s" % (vr(KR + 16 * (2 * u + T) + 4 * d, 4), vKA, sr(rK, 4), sKB + u, T * 1024 + d * 64, NT))
         for u in range(2) for T in range(2) for d in range(4)]
vl = [("V%d" % (8 * u + e), "buffer_load_dwordx4 %s, v%d, %s, s%d offen offset:%d%s" % (vr(VR_ + 32 * u + 4 * e, 4), vVA, sr(rV, 4), sKB + u, e * 256, NT))
         for u in range(2) for e in range(8)]
pend += vl[:GPOS]
issue_until("X"); topup(EXTRA)
C("layernorm of row = wave")
NEED("X")
if STAMP:
    A("s_waitcnt lgkmcnt(0)"); A("s_mov_b32 s16, s100"); nws[0] += 1
wstamp()
for q in range(8):
    A("v_lshlrev_b32 v%d, 16, v%d" % (XF + 2 * q, XR + q))
    A("v_and_b32 v%d, 0xffff0000, v%d" % (XF + 2 * q + 1, XR + q))
A("v_add_f32 v%d, v%d, v%d" % (s_, XF, XF + 1))
for i in range(2, 16): A("v_add_f32 v%d, v%d, v%d" % (s_, s_, XF + i))
xlane_row("v_add_f32", s_, t_); xlane_hi("v_add_f32", s_, t_, u_)
A("v_mul_f32 v%d, 0x3a800000, v%d" % (m_, s_))
A("v_mov_b32 v%d, 0" % s_)
for i in range(16):
    A("v_sub_f32 v%d, v%d, v%d" % (t_, XF + i, m_))
    A("v_fmac_f32 v%d, v%d, v%d" % (s_, t_, t_))
xlane_row("v_add_f32", s_, t_); xlane_hi("v_add_f32", s_, t_, u_)
A("v_mul_f32 v%d, 0x3a800000, v%d" % (s_, s_))
bf16r(m_, t_); bf16r(s_, t_)
A("v_add_f32 v%d, 0x3727c5ac, v%d" % (s_, s_)); bf16r(s_, t_)
A("v_sqrt_f32 v%d, v%d" % (sd_, s_)); nop(1); bf16r(sd_, t_)
A("v_rcp_f32 v%d, v%d" % (r_, sd_)); nop(1)
for i in range(16): A("v_sub_f32 v%d, v%d, v%d" % (XF + i, XF + i, m_))
for q in range(8): bf16r_pair(XF + 2 * q, XF + 2 * q + 1, t_)
for i in range(16):
    A("v_mul_f32 v%d, v%d, v%d" % (t_, XF + i, r_))
    A("v_fma_f32 v%d, -v%d, v%d, v%d" % (u_, t_, sd_, XF + i))
    A("v_fma_f32 v%d, v%d, v%d, v%d" % (XF + i, u_, r_, t_))
for q in range(8): A("v_cvt_pk_bf16_f32 v%d, v%d, v%d" % (XR + q, XF + 2 * q, XF + 2 * q + 1))
A("v_add_u32 v%d, s%d, v%d" % (vA, sA0 + 14, vL16))
A("ds_write_b128 v%d, %s offset:%d" % (vA, vr(XR, 4), XN))
A("ds_write_b128 v%d, %s offset:%d" % (vA, vr(XR + 4, 4), XN + 1024))
barrier()
A("s_add_u32 s%d, s%d, 0x9e3779b9" % (sTAG, sTAG))
A("s_and_b32 s%d, s%d, 0xff" % (sT0, sTAG))
A("s_bfe_u32 s%d, s%d, 0x80008" % (sT1, sTAG))
A("v_mov_b32 v%d, s%d" % (vTB0, sT0)); A("v_mov_b32 v%d, s%d" % (vTB1, sT1))
wstamp()
C("phase A: wq half tile (two k-sets in A rows 0-7 / 8-15)")
A("v_and_b32 v%d, 7, v3" % vA)
A("v_lshlrev_b32 v%d, 11, v%d" % (vA, vA))
A("v_lshrrev_b32 v%d, 3, v3" % vB)
A("v_lshlrev_b32 v%d, 2, v%d" % (vB, vB))
A("v_add_u32 v%d, v%d, v4" % (vB, vB))
A("v_lshl_add_u32 v%d, v%d, 3, v%d" % (t_, vB, vA))
A("s_lshr_b32 s%d, s%d, 6" % (sT0, sWG))
A("s_lshl_b32 s%d, s%d, 3" % (sT0, sT0))
A("s_add_u32 s%d, s%d, s%d" % (sT0, sT0, sWAVE))
A("s_lshl_b32 s%d, s%d, 6" % (sT0, sT0))
A("v_add_u32 v%d, s%d, v%d" % (t_, sT0, t_))
A("ds_read_b64 %s, v%d offset:%d" % (vr(AF, 2), t_, XN))
A("v_lshl_add_u32 v%d, v%d, 4, v%d" % (u_, vB, vA))
A("s_lshr_b32 s%d, s%d, 1" % (sT0, sWG))
A("s_and_b32 s%d, s%d, 1" % (sT0, sT0))
A("s_lshl_b32 s%d, s%d, 3" % (sT0, sT0))
A("s_add_u32 s%d, s%d, s%d" % (sT0, sT0, sWAVE))
A("s_lshl_b32 s%d, s%d, 7" % (sT0, sT0))
A("v_add_u32 v%d, s%d, v%d" % (u_, sT0, u_))
AF2 = 242
A("ds_read_b128 %s, v%d offset:%d" % (vr(AF2, 4), u_, XN))
A("v_lshrrev_b32 v%d, 1, v4" % vA)
A("s_lshl_b32 s%d, s%d, 1" % (sT0, sWAVE))
A("v_add_u32 v%d, s%d, v%d" % (vA, sT0, vA))
A("v_mul_u32_u24 v%d, 2176, v%d" % (vA, vA))
A("v_and_b32 v%d, 7, v3" % vB)
A("v_mul_u32_u24 v%d, 272, v%d" % (vB, vB))
A("v_add_u32 v%d, v%d, v%d" % (vA, vA, vB))
A("v_and_b32 v%d, 1, v4" % vB)
A("v_lshl_add_u32 v%d, v%d, 4, v%d" % (vB, vB, vA))
A("v_add_u32 v%d, %d, v%d" % (vA, TA, vB))
A("v_mul_u32_u24 v%d, 272, v3" % vC)
A("v_lshl_add_u32 v%d, v4, 4, v%d" % (vC, vC))
A("s_mul_i32 s%d, s%d, 4352" % (sT0, sWAVE))
A("v_add_u32 v%d, s%d, v%d" % (vC, sT0, vC))
A("v_and_b32 v%d, 31, v2" % t_)
A("v_lshrrev_b32 v%d, 1, v%d" % (vRD, t_))
A("v_lshlrev_b32 v%d, 4, v%d" % (vRD, vRD))
A("v_lshl_add_u32 v%d, v%d, 7, v%d" % (vRD, t_, vRD))
A("v_lshrrev_b32 v%d, 5, v2" % u_)
A("v_mul_u32_u24 v%d, %d, v%d" % (u_, 4 * 4352, u_))
A("v_add_u32 v%d, v%d, v%d" % (vRD, vRD, u_))
A("s_lshl_b32 s%d, s%d, 2" % (sT0, sWAVE))
A("v_add_u32 v%d, s%d, v%d" % (vRD, sT0, vRD))
A("v_lshrrev_b32 v%d, 1, v3" % vRD2)
A("v_lshlrev_b32 v%d, 4, v%d" % (vRD2, vRD2))
A("v_lshl_add_u32 v%d, v3, 7, v%d" % (vRD2, vRD2))
A("v_mul_u32_u24 v%d, %d, v4" % (u_, 4 * 2176))
A("v_add_u32 v%d, v%d, v%d" % (vRD2, vRD2, u_))
A("v_add_u32 v%d, s%d, v%d" % (vRD2, sT0, vRD2))
A("s_lshl_b32 s%d, s%d, 9" % (sT0, sWAVE))
A("v_lshlrev_b32 v%d, 4, v%d" % (vST, t_))
A("v_add_u32 v%d, s%d, v%d" % (vST, sT0, vST))
issue_until("W3"); topup(EXTRA)
NEED("W3", " lgkmcnt(0)")
tile_mfma(WR, 4, AF, ACC, TMP)
tile_store(ACC, vA, 0x00ff00ff, 0xff00ff00)
barrier()
wstamp()
RB = 224
def row_reduce(T, vrd, stride, swaps):
    A("v_add_u32 v%d, %d, v%d" % (vA, T, vrd))
    for t in range(4):
        for j in range(4):
            A("ds_read_b32 v%d, v%d offset:%d" % (RB + 4 * t + j, vA, t * stride + 32 * j))
    A("s_waitcnt lgkmcnt(0)")
    for j in range(4):
        A("v_add_f32 v%d, v%d, v%d" % (RB + j, RB + j, RB + 4 + j))
        A("v_add_f32 v%d, v%d, v%d" % (RB + 8 + j, RB + 8 + j, RB + 12 + j))
    for j in range(4): A("v_add_f32 v%d, v%d, v%d" % (RB + j, RB + j, RB + 8 + j))
    xadd4(RB, RB + 4, swaps)
    embed4(RB)
def pub64(T, soff):
    if NOPUB: A("s_mov_b32 s%d, 0x%x" % (soff, WS_SIZE))
    row_reduce(T, vRD2, 2176, (P16, P32))
    A("s_mov_b64 exec, 0xffff")
    LD("buffer_store_dwordx4 %s, v%d, %s, s%d offen sc1" % (vr(RB, 4), vL16, sr(rWS, 4), soff), windowed=False)
    A("s_mov_b64 exec, -1"); nop(1)
def pubcol(T, soff):
    if NOPUB: A("s_mov_b32 s%d, 0x%x" % (soff, WS_SIZE))
    A("v_add_u32 v%d, %d, v%d" % (vA, T, 242))
    for t in range(4): A("ds_read_b128 %s, v%d offset:%d" % (vr(RB + 4 * t, 4), vA, t * 4352))
    A("s_waitcnt lgkmcnt(0)")
    for j in range(4):
        A("v_add_f32 v%d, v%d, v%d" % (RB + j, RB + j, RB + 4 + j))
        A("v_add_f32 v%d, v%d, v%d" % (RB + 8 + j, RB + 8 + j, RB + 12 + j))
    for j in range(4): A("v_add_f32 v%d, v%d, v%d" % (RB + j, RB + j, RB + 8 + j))
    xadd4(RB, RB + 4, (P32,))
    embed4(RB)
    A("s_mov_b32 exec_hi, 0")
    LD("buffer_store_dwordx4 %s, v%d, %s, s%d offen sc1" % (vr(RB, 4), 243, sr(rWS, 4), soff), windowed=False)
    A("s_mov_b64 exec, -1"); nop(1)
def pub128(T, soff):
    if NOPUB: A("s_mov_b32 s%d, 0x%x" % (soff, WS_SIZE))
    row_reduce(T, vRD, 4352, (P32,))
    A("s_mov_b32 exec_hi, 0")
    LD("buffer_store_dwordx4 %s, v%d, %s, s%d offen sc1" % (vr(RB, 4), vST, sr(rWS, 4), soff), windowed=False)
    A("s_mov_b64 exec, -1"); nop(1)
C("publish q partial row b = wave")
A("s_lshr_b32 s%d, s%d, 6" % (sT0, sWG))
A("s_lshl_b32 s%d, s%d, 3" % (sT0, sT0))
A("s_add_u32 s%d, s%d, s%d" % (sT0, sT0, sWAVE))
A("s_lshl_b32 s%d, s%d, 14" % (sT0, sT0))
A("s_and_b32 s%d, s%d, 63" % (sT1, sWG))
A("s_lshl_b32 s%d, s%d, 8" % (sT1, sT1))
A("s_add_u32 s%d, s%d, s%d" % (sT0, sT0, sT1))
A("s_add_u32 s%d, s%d, 0x%x" % (sA0, sT0, WS_Q))
while "G7" not in idx: pop_issue(False)
pub64(TA, sA0)
topup(SKIP)
C("phase B: gate/up tile (two k-sets)")
A("v_add_u32 v%d, %d, v%d" % (vA, TB, vB))
NEED("G7")
tile_mfma(GR, 8, AF2, ACC, TMP)
tile_store(ACC, vA, 0x00ff00ff, 0xff00ff00)
barrier()
wstamp()
C("publish g/u partial row b = wave (workgroups >= 224 carry no unit: their store is dropped by the range check)")
A("s_and_b32 s%d, s%d, 3" % (sT0, sWG))
A("s_and_b32 s%d, s%d, 1" % (sT1, sT0))
A("s_lshr_b32 s%d, s%d, 1" % (sT2, sT0))
A("s_lshl_b32 s%d, s%d, 1" % (sT1, sT1))
A("s_add_u32 s%d, s%d, s%d" % (sT1, sT1, sT2))
A("s_lshl_b32 s%d, s%d, 3" % (sT1, sT1))
A("s_add_u32 s%d, s%d, s%d" % (sT1, sT1, sWAVE))
A("s_mul_i32 s%d, s%d, 14336" % (sT1, sT1))
A("s_lshr_b32 s%d, s%d, 2" % (sT3, sWG))
A("s_lshl_b32 s%d, s%d, 8" % (sT3, sT3))
A("s_add_u32 s%d, s%d, s%d" % (sT1, sT1, sT3))
A("s_add_u32 s%d, s%d, 0x%x" % (sA0, sT1, WS_GU))
A("s_cmp_ge_u32 s%d, 224" % sWG)
A("s_cselect_b32 s%d, 0x%x, s%d" % (sA0, WS_SIZE, sA0))
pub64(TB, sA0)
WIN = WIN2
if PRIO == "3": prio(1, "L_pr1")
C("gathers: q head = wave of (b = w>>5, hkv = (w>>3)&3), lane (quad = lane&31, ks = 2t + (lane>>5)); g/u row b = wave, lane (quad, ks = lane>>5)")
A("s_mov_b32 s%d, s%d" % (sT0, sLO))
A("s_lshl_b32 s%d, s%d, 12" % (sT1, sLO))
A("s_lshl_b32 s%d, s%d, 9" % (sT2, sWAVE))
A("s_add_u32 s%d, s%d, s%d" % (sT1, sT1, sT2))
A("s_add_u32 s%d, s%d, 0x%x" % (sA0, sT1, WS_Q))
A("s_add_u32 s%d, s%d, 0x40000" % (sA0 + 1, sA0))
A("s_mul_i32 s%d, s%d, 448" % (sT1, sT0))
A("s_mul_i32 s%d, s%d, 14336" % (sT2, sWAVE))
A("s_add_u32 s%d, s%d, s%d" % (sT1, sT1, sT2))
A("s_add_u32 s%d, s%d, 0x%x" % (sA0 + 2, sT1, WS_GU))
A("s_add_u32 s%d, s%d, %d" % (sA0 + 3, sA0 + 2, 16 * 14336))
vQA = 1; vHA = 0
if NOGATH:
    for k in range(4): A("s_mov_b32 s%d, 0x%x" % (sA0 + k, WS_SIZE))
vQA = 14; vHA = 1
A("v_and_b32 v%d, 31, v2" % t_)
A("v_lshrrev_b32 v%d, 5, v2" % u_)
A("v_lshlrev_b32 v%d, 17, v%d" % (vQA, u_))
A("v_lshl_add_u32 v%d, v%d, 4, v%d" % (vQA, t_, vQA))
A("v_min_u32 v%d, 27, v%d" % (t_, t_))
A("v_mul_u32_u24 v%d, %d, v%d" % (vHA, 8 * 14336, u_))
A("v_lshl_add_u32 v%d, v%d, 4, v%d" % (vHA, t_, vHA))
gl = [("QG%d" % t, "buffer_load_dwordx4 %s, v%d, %s, s%d offen" % (vr(QG + 4 * t, 4), vQA, sr(rWS, 4), sA0 + t)) for t in range(2)]
gl += [("HG%d" % m, "buffer_load_dwordx4 %s, v%d, %s, s%d offen" % (vr(HG + 4 * m, 4), vHA, sr(rWS, 4), sA0 + 2 + m)) for m in range(2)]
pend += [(n, t + GSC) for n, t in gl] + vl[GPOS:]
sDW = 34 if STAMP else 16
A("s_mov_b32 s%d, s%d" % (sT0, sLO))
A("s_lshl_b32 s%d, s%d, 8" % (sT1, sHI))
A("s_lshl_b32 s%d, s%d, 15" % (sT2, sWAVE))
A("s_add_u32 s%d, s%d, s%d" % (sT1, sT1, sT2))
A("s_mul_i32 s%d, s%d, %d" % (sT3, sT0, 112 * 2048))
A("s_add_u32 s%d, s%d, s%d" % (sDW, sT3, sT1))
A("s_cmp_eq_u32 s%d, 7" % sWAVE)
A("s_cselect_b32 s%d, 7340032, s%d" % (sDW, sDW))
A("s_add_u32 s%d, s%d, 4096" % (sDW + 1, sDW))
A("s_lshl_b32 s%d, s%d, 18" % (sT3, sT0))
A("s_add_u32 s%d, s%d, s%d" % (sDW + 2, sT3, sT1))
A("s_add_u32 s%d, s%d, 4096" % (sDW + 3, sDW + 2))
pend += [("D%d" % t, "buffer_load_dwordx4 %s, v%d, %s, s%d offen offset:%d%s" % (vr(DR + 4 * t, 4), vDA, sr(rWD, 4), sDW + (t >> 1), (t & 1) * 2048, NT)) for t in range(4)]
vRC = 242; vSC = 243
A("s_lshl_b32 s%d, s%d, 4" % (sT0, sWAVE))
A("v_add_u32 v%d, s%d, v3" % (t_, sT0))
A("v_and_b32 v%d, 1, v4" % u_)
A("v_lshlrev_b32 v%d, 4, v%d" % (u_, u_))
A("v_lshl_add_u32 v%d, v%d, 5, v%d" % (vSC, t_, u_))
A("v_lshrrev_b32 v%d, 3, v%d" % (t_, t_))
A("v_lshl_add_u32 v%d, v%d, 4, v%d" % (vRC, t_, vSC))
A("v_lshrrev_b32 v%d, 1, v4" % t_)
A("v_mul_u32_u24 v%d, %d, v%d" % (t_, 4 * 4352, t_))
A("v_add_u32 v%d, v%d, v%d" % (vRC, vRC, t_))
pend += [("O%d" % t, "buffer_load_dwordx4 %s, v%d, %s, s%d offen offset:%d%s" % (vr(WOR + 4 * t, 4), vDA, sr(rWO, 4), sDW + 2 + (t >> 1), (t & 1) * 2048, NT)) for t in range(4)]
topup(SKIP)
issue_until("HG1"); topup(EXTRA)
NEED("QG1")
wstamp()
embcheck([QG, QG + 4], s_, t_, u_, "L_g_ok")
LBL("L_g_retry")
for n, t in gl[:2]: A(t + " sc1")
A("s_waitcnt vmcnt(0)")
embcheck([QG, QG + 4], s_, t_, u_, "L_g_ok")
bounded_retry("L_g_retry")
LBL("L_g_ok")
wstamp()
C("q -> QL[head = wave][quad]")
XT = 192
for j in range(4): A("v_add_f32 v%d, v%d, v%d" % (QG + j, QG + j, QG + 4 + j))
xadd4(QG, XT, (P32,))
A("v_cvt_pk_bf16_f32 v%d, v%d, v%d" % (QG, QG, QG + 1))
A("v_cvt_pk_bf16_f32 v%d, v%d, v%d" % (QG + 1, QG + 2, QG + 3))
A("v_lshlrev_b32 v%d, 3, v2" % vA)
A("s_lshl_b32 s%d, s%d, 8" % (sT0, sWAVE))
A("v_add_u32 v%d, s%d, v%d" % (vA, sT0, vA))
A("s_mov_b32 exec_hi, 0")
A("ds_write_b64 v%d, %s offset:%d" % (vA, vr(QG, 2), QL))
A("s_mov_b64 exec, -1")
C("h = bf16(bf16(sigmoid(g)) * u) -> HL[b = wave][quad] (quads >= 28 zero)")
NEED("HG1")
embcheck([HG, HG + 4], s_, t_, u_, "L_h_ok")
LBL("L_h_retry")
for n, t in gl[2:]: A(t + " sc1")
A("s_waitcnt vmcnt(0)")
embcheck([HG, HG + 4], s_, t_, u_, "L_h_ok")
bounded_retry("L_h_retry")
LBL("L_h_ok")
xadd4(HG, 56, (P32,)); xadd4(HG + 4, 56, (P32,))
for q in range(4): bf16r_pair(HG + 2 * q, HG + 2 * q + 1, t_)
for j in range(4): A("v_mul_f32 v%d, s%d, v%d" % (HG + j, sLOG2E, HG + j))
for j in range(4): A("v_exp_f32 v%d, -v%d" % (HG + j, HG + j))
nop(1)
for j in range(4): A("v_add_f32 v%d, 1.0, v%d" % (HG + j, HG + j))
for j in range(4): A("v_rcp_f32 v%d, v%d" % (HG + j, HG + j))
nop(1)
bf16r_pair(HG, HG + 1, t_); bf16r_pair(HG + 2, HG + 3, t_)
for j in range(4): A("v_mul_f32 v%d, v%d, v%d" % (HG + j, HG + j, HG + 4 + j))
A("v_cmp_gt_u32 vcc, 28, v2")
A("v_cvt_pk_bf16_f32 v%d, v%d, v%d" % (HG, HG, HG + 1))
A("v_cvt_pk_bf16_f32 v%d, v%d, v%d" % (HG + 1, HG + 2, HG + 3))
A("v_lshlrev_b32 v%d, 3, v2" % vA)
A("s_lshl_b32 s%d, s%d, 8" % (sT0, sWAVE))
A("v_add_u32 v%d, s%d, v%d" % (vA, sT0, vA))
A("v_cndmask_b32 v%d, 0, v%d, vcc" % (HG, HG))
A("v_cndmask_b32 v%d, 0, v%d, vcc" % (HG + 1, HG + 1))
A("s_mov_b32 exec_hi, 0")
A("ds_write_b64 v%d, %s offset:%d" % (vA, vr(HG, 2), HL))
A("s_mov_b64 exec, -1")
while pend: pop_issue()
barrier()
wstamp()
if PRIO in ("2", "3"): A("s_setprio 0")
C("QK^T")
A("v_and_b32 v%d, 7, v3" % vA)
A("v_lshlrev_b32 v%d, 8, v%d" % (vA, vA))
A("v_lshl_add_u32 v%d, v4, 4, v%d" % (vA, vA))
QF4 = 192
for d in range(4): A("ds_read_b128 %s, v%d offset:%d" % (vr(QF4 + 4 * d, 4), vA, QL + 64 * d))
for d in range(4):
    A("s_waitcnt lgkmcnt(%d)" % (3 - d))
    for t in range(4):
        c = "0" if d == 0 else vr(SC + 4 * t, 4)
        A("v_mfma_f32_16x16x32_bf16 %s, %s, %s, %s" % (vr(SC + 4 * t, 4), vr(KR + 16 * t + 4 * d, 4), vr(QF4 + 4 * d, 4), c))
topup(EXTRA)
nop(8)
C("scores: bf16 round, scale, bf16 round; max")
for q in range(8): bf16r_pair(SC + 2 * q, SC + 2 * q + 1, t_)
for i in range(16): A("v_mul_f32 v%d, s%d, v%d" % (SC + i, sSCALE, SC + i))
for q in range(8): bf16r_pair(SC + 2 * q, SC + 2 * q + 1, t_)
A("v_max3_f32 v%d, v%d, v%d, v%d" % (m_, SC, SC + 1, SC + 2))
for i in range(3, 15, 2): A("v_max3_f32 v%d, v%d, v%d, v%d" % (m_, m_, SC + i, SC + i + 1))
A("v_max_f32 v%d, v%d, v%d" % (m_, m_, SC + 15))
xlane_hi("v_max_f32", m_, t_, u_)
A("v_lshlrev_b32 v%d, 5, v3" % vA)
A("s_lshl_b32 s%d, s%d, 2" % (sT0, sWAVE))
A("v_add_u32 v%d, s%d, v%d" % (vA, sT0, vA))
A("s_mov_b64 exec, 0xff")
A("ds_write_b32 v%d, v%d offset:%d" % (vA, m_, MX))
A("s_mov_b64 exec, -1")
topup(EXTRA)
barrier()
wstamp()
PF = 64
A("v_and_b32 v%d, 7, v3" % vB)
A("v_lshlrev_b32 v%d, 5, v%d" % (vB, vB))
A("ds_read_b128 %s, v%d offset:%d" % (vr(PF, 4), vB, MX))
A("ds_read_b128 %s, v%d offset:%d" % (vr(PF + 4, 4), vB, MX + 16))
A("s_waitcnt lgkmcnt(0)")
A("v_max3_f32 v%d, v%d, v%d, v%d" % (m_, PF, PF + 1, PF + 2))
A("v_max3_f32 v%d, v%d, v%d, v%d" % (m_, m_, PF + 3, PF + 4))
A("v_max3_f32 v%d, v%d, v%d, v%d" % (m_, m_, PF + 5, PF + 6))
A("v_max_f32 v%d, v%d, v%d" % (m_, m_, PF + 7))
A("v_mul_f32 v%d, s%d, v%d" % (m_, sLOG2E, m_))
for i in range(16): A("v_fma_f32 v%d, v%d, s%d, -v%d" % (SC + i, SC + i, sLOG2E, m_))
for i in range(16): A("v_exp_f32 v%d, v%d" % (SC + i, SC + i))
nop(1)
A("v_add_f32 v%d, v%d, v%d" % (s_, SC, SC + 1))
for i in range(2, 16): A("v_add_f32 v%d, v%d, v%d" % (s_, s_, SC + i))
for q in range(8): A("v_cvt_pk_bf16_f32 v%d, v%d, v%d" % (PF + q, SC + 2 * q, SC + 2 * q + 1))
xlane_hi("v_add_f32", s_, t_, u_)
A("s_mov_b64 exec, 0xff")
A("ds_write_b32 v%d, v%d offset:%d" % (vA, s_, LS))
A("s_mov_b64 exec, -1")
C("PV, first 32 keys")
issue_until("V7")
NEED("V7")
tile_mfma(VR_, 8, PF, ACC, TMP, True)
A("v_and_b32 v%d, 7, v3" % vB)
A("v_lshlrev_b32 v%d, 8, v%d" % (vB, vB))
A("v_lshl_add_u32 v%d, v4, 3, v%d" % (vB, vB))
A("s_lshl_b32 s%d, s%d, 5" % (sT0, sWAVE))
A("v_add_u32 v%d, s%d, v%d" % (vAF, sT0, vB))
C("PV, last 32 keys")
NEED("V15")
wstamp()
tile_mfma(VR_ + 32, 8, PF + 4, ACC, TMP, False)
A("v_add_u32 v%d, %d, v%d" % (vA, TC, vC))
tile_store(ACC, vA, 0xffffffff, 0)
barrier()
wstamp()
C("publish attention partial row head = wave, and {M,L} of that head")
MB = 72
A("s_lshl_b32 s%d, s%d, 15" % (sT0, sLO))
A("s_lshl_b32 s%d, s%d, 12" % (sT1, sHI))
A("s_add_u32 s%d, s%d, s%d" % (sT0, sT0, sT1))
A("s_add_u32 s%d, s%d, 0x%x" % (sA0 + 4, sT0, WS_O))
A("s_lshl_b32 s%d, s%d, 5" % (sT0, sWAVE))
A("v_mov_b32 v%d, s%d" % (vB, sT0))
A("ds_read_b128 %s, v%d offset:%d" % (vr(MB, 4), vB, LS))
A("ds_read_b128 %s, v%d offset:%d" % (vr(MB + 4, 4), vB, LS + 16))
A("ds_read_b128 %s, v%d offset:%d" % (vr(MB + 8, 4), vB, MX))
A("ds_read_b128 %s, v%d offset:%d" % (vr(MB + 12, 4), vB, MX + 16))
pub128(TC, sA0 + 4)
A("v_add_f32 v%d, v%d, v%d" % (MB + 18, MB, MB + 1))
for i in range(2, 8): A("v_add_f32 v%d, v%d, v%d" % (MB + 18, MB + 18, MB + i))
A("v_max3_f32 v%d, v%d, v%d, v%d" % (MB + 16, MB + 8, MB + 9, MB + 10))
A("v_max3_f32 v%d, v%d, v%d, v%d" % (MB + 16, MB + 16, MB + 11, MB + 12))
A("v_max3_f32 v%d, v%d, v%d, v%d" % (MB + 16, MB + 16, MB + 13, MB + 14))
A("v_max_f32 v%d, v%d, v%d" % (MB + 16, MB + 16, MB + 15))
A("v_mov_b32 v%d, s%d" % (MB + 17, sTAG)); A("v_mov_b32 v%d, s%d" % (MB + 19, sTAG))
A("s_lshl_b32 s%d, s%d, 10" % (sT0, sLO))
A("s_lshl_b32 s%d, s%d, 4" % (sT1, sHI))
A("s_add_u32 s%d, s%d, s%d" % (sT0, sT0, sT1))
A("s_lshl_b32 s%d, s%d, 7" % (sT1, sWAVE))
A("s_add_u32 s%d, s%d, s%d" % (sT0, sT0, sT1))
A("s_add_u32 s%d, s%d, 0x%x" % (sA0 + 5, sT0, WS_ML))
A("v_mov_b32 v%d, 0" % vB)
A("s_mov_b64 exec, 1")
LD("buffer_store_dwordx4 %s, v%d, %s, s%d offen sc1" % (vr(MB + 16, 4), vB, sr(rWS, 4), sA0 + 5), windowed=False)
A("s_mov_b64 exec, -1")
wstamp()
C("phase D: down half tile")
DACC = 96
A("ds_read_b64 %s, v%d offset:%d" % (vr(AF, 2), vAF, HL))
A("v_add_u32 v%d, %d, v%d" % (vA, TA, vC))
NEED("D3", " lgkmcnt(0)")
tile_mfma(DR, 4, AF, DACC, TMP)
tile_store(DACC, vA, 0xffffffff, 0)
barrier()
C("publish d partial (column-major), then pre-transpose the wo fragments")
A("s_lshl_b32 s%d, s%d, 12" % (sT0, sWG))
A("s_add_u32 s%d, s%d, 0x%x" % (sA0 + 10, sT0, WS_S))
A("s_add_u32 s%d, s%d, 0x%x" % (sA0 + 11, sT0, WS_D))
pubcol(TA, sA0 + 11)
EF = 128
NEED("O3")
for j in range(8):
    q = j >> 1; sel = sSELHI if (j & 1) else sSELLO
    for p in range(2):
        A("v_perm_b32 v%d, v%d, v%d, s%d" % (EF + 2 * j + p, WOR + 4 * (2 * p + 1) + q, WOR + 4 * (2 * p) + q, sel))
C("attention partials for batch = wave, head h = w>>3: poll {M,L} of the 8 splits, then gather O (lane: quad = lane&31, sp = 2t + (lane>>5))")
OG = 64; MLR = 96
A("s_lshr_b32 s%d, s%d, 3" % (sT0, sLO))
A("s_and_b32 s%d, s%d, 7" % (sT1, sLO))
A("s_lshl_b32 s%d, s%d, 2" % (sT2, sWAVE))
A("s_add_u32 s%d, s%d, s%d" % (sT2, sT2, sT0))
A("s_lshl_b32 s%d, s%d, 15" % (sT3, sT2))
A("s_lshl_b32 s%d, s%d, 9" % (sT4, sT1))
A("s_add_u32 s%d, s%d, s%d" % (sT3, sT3, sT4))
A("s_add_u32 s%d, s%d, 0x%x" % (sA0, sT3, WS_O))
for t in range(1, 4): A("s_add_u32 s%d, s%d, %d" % (sA0 + t, sA0, t * 8192))
A("s_lshl_b32 s%d, s%d, 10" % (sT3, sT2))
A("s_lshl_b32 s%d, s%d, 7" % (sT4, sT1))
A("s_add_u32 s%d, s%d, s%d" % (sT3, sT3, sT4))
A("s_add_u32 s%d, s%d, 0x%x" % (sA0 + 8, sT3, WS_ML))
A("v_and_b32 v%d, 31, v2" % t_)
A("v_lshrrev_b32 v%d, 5, v2" % u_)
A("v_lshlrev_b32 v%d, 12, v%d" % (vA, u_))
A("v_lshl_add_u32 v%d, v%d, 4, v%d" % (vA, t_, vA))
A("v_lshlrev_b32 v%d, 4, v%d" % (vB, u_))
LBL("L_pollc")
for t in range(4):
    A("buffer_load_dwordx4 %s, v%d, %s, s%d offen offset:%d sc1" % (vr(MLR + 4 * t, 4), vB, sr(rWS, 4), sA0 + 8, 32 * t))
A("s_waitcnt vmcnt(0)")
tagcheck([MLR + 2 * i + 1 for i in range(8)], s_, t_, "L_pollc_ok")
bounded_retry("L_pollc")
LBL("L_pollc_ok")
for t in range(4):
    A("buffer_load_dwordx4 %s, v%d, %s, s%d offen%s" % (vr(OG + 4 * t, 4), vA, sr(rWS, 4), sA0 + t, GSC))
C("weights while the gather flies: M over both halves")
A("v_max3_f32 v%d, v%d, v%d, v%d" % (m_, MLR, MLR + 4, MLR + 8))
A("v_max_f32 v%d, v%d, v%d" % (m_, m_, MLR + 12))
A("v_mov_b32 v%d, v%d" % (t_, m_)); A("v_mov_b32 v%d, v%d" % (u_, m_)); nop(2)
A("v_permlane32_swap_b32 v%d, v%d" % (t_, u_)); nop(1)
A("v_max_f32 v%d, v%d, v%d" % (m_, t_, u_))
WT = 112
for t in range(4):
    A("v_sub_f32 v%d, v%d, v%d" % (WT + t, MLR + 4 * t, m_))
    A("v_mul_f32 v%d, s%d, v%d" % (WT + t, sLOG2E, WT + t))
for t in range(4): A("v_exp_f32 v%d, v%d" % (WT + t, WT + t))
nop(1)
A("v_mul_f32 v%d, v%d, v%d" % (r_, WT, MLR + 2))
for t in range(1, 4): A("v_fmac_f32 v%d, v%d, v%d" % (r_, WT + t, MLR + 4 * t + 2))
A("v_mov_b32 v%d, v%d" % (t_, r_)); A("v_mov_b32 v%d, v%d" % (u_, r_)); nop(2)
A("v_permlane32_swap_b32 v%d, v%d" % (t_, u_)); nop(1)
A("v_add_f32 v%d, v%d, v%d" % (r_, t_, u_))
A("v_rcp_f32 v%d, v%d" % (r_, r_))
A("s_waitcnt vmcnt(0)")
embcheck([OG + 4 * t for t in range(4)], s_, t_, u_, "L_gc_ok")
LBL("L_gc")
for t in range(4):
    A("buffer_load_dwordx4 %s, v%d, %s, s%d offen sc1" % (vr(OG + 4 * t, 4), vA, sr(rWS, 4), sA0 + t))
A("s_waitcnt vmcnt(0)")
embcheck([OG + 4 * t for t in range(4)], s_, t_, u_, "L_gc_ok")
bounded_retry("L_gc")
LBL("L_gc_ok")
wstamp()
OA = 116
for j in range(4): A("v_mul_f32 v%d, v%d, v%d" % (OA + j, WT, OG + j))
for t in range(1, 4):
    for j in range(4): A("v_fmac_f32 v%d, v%d, v%d" % (OA + j, WT + t, OG + 4 * t + j))
xadd4(OA, OA + 4, (P32,))
for j in range(4): A("v_mul_f32 v%d, v%d, v%d" % (OA + j, OA + j, r_))
A("v_cvt_pk_bf16_f32 v%d, v%d, v%d" % (OA, OA, OA + 1))
A("v_cvt_pk_bf16_f32 v%d, v%d, v%d" % (OA + 1, OA + 2, OA + 3))
A("v_lshlrev_b32 v%d, 3, v2" % vA)
A("s_lshl_b32 s%d, s%d, 8" % (sT0, sWAVE))
A("v_add_u32 v%d, s%d, v%d" % (vA, sT0, vA))
A("s_mov_b32 exec_hi, 0")
A("ds_write_b64 v%d, %s offset:%d" % (vA, vr(OA, 2), OL))
A("s_mov_b64 exec, -1")
A("v_add_u32 v%d, %d, v%d" % (vB, TB, vC))
barrier()
wstamp()
C("phase E: wo half tile")
A("ds_read_b64 %s, v%d offset:%d" % (vr(AF, 2), vAF, OL))
A("s_waitcnt lgkmcnt(0)")
for j in range(8):
    A("v_mfma_f32_16x16x16_bf16 %s, %s, %s, 0" % (vr(ACC + 4 * j, 4), vr(AF, 2), vr(EF + 2 * j, 2)))
tile_store(ACC, vB, 0xffffffff, 0)
barrier()
pubcol(TB, sA0 + 10)
wstamp()
C("final gather: wave v takes producers i' = 4v + (lane>>4); lane (quad = lane&7, sd = (lane>>3)&1)")
A("v_lshlrev_b32 v%d, 12, v4" % vA)
A("v_lshrrev_b32 v%d, 3, v3" % vB)
A("v_lshl_add_u32 v%d, v%d, 21, v%d" % (vA, vB, vA))
A("v_and_b32 v%d, 7, v3" % vB)
A("v_lshl_add_u32 v%d, v%d, 4, v%d" % (vA, vB, vA))
A("s_lshl_b32 s%d, s%d, 17" % (sT1, sHI))
A("s_lshl_b32 s%d, s%d, 7" % (sT2, sLO))
A("s_add_u32 s%d, s%d, s%d" % (sT1, sT1, sT2))
A("s_lshl_b32 s%d, s%d, 14" % (sT2, sWAVE))
A("s_add_u32 s%d, s%d, s%d" % (sT1, sT1, sT2))
A("s_add_u32 s%d, s%d, 0x%x" % (sA0, sT1, WS_S))
FG = 64
LBL("L_polld")
A("buffer_load_dwordx4 %s, v%d, %s, s%d offen sc1" % (vr(FG, 4), vA, sr(rWS, 4), sA0))
A("s_waitcnt vmcnt(0)")
embcheck([FG], s_, t_, u_, "L_polld_ok")
bounded_retry("L_polld")
LBL("L_polld_ok")
wstamp()
xadd4(FG, FG + 4, (P16, P32))
A("s_lshl_b32 s%d, s%d, 8" % (sT0, sWAVE))
A("v_add_u32 v%d, s%d, v%d" % (vA, sT0, vL16))
A("s_mov_b64 exec, 0xffff")
A("ds_write_b128 v%d, %s offset:%d" % (vA, vr(FG, 4), FS))
A("s_mov_b64 exec, -1")
barrier()
wstamp()
wdump()
A("s_cmp_lg_u32 s%d, 0" % sWAVE)
A("s_cbranch_scc1 L_done")
R0 = 64
A("v_lshlrev_b32 v%d, 2, v2" % vB)
for t in range(8): A("ds_read_b32 v%d, v%d offset:%d" % (R0 + t, vB, FS + 256 * t))
A("s_waitcnt lgkmcnt(0)")
for st in (4, 2, 1):
    for i in range(st): A("v_add_f32 v%d, v%d, v%d" % (R0 + i, R0 + i, R0 + st + i))
bf16r(R0, t_)
A("v_mul_f32 v%d, s%d, v%d" % (R0 + 1, sLOG2E, R0))
A("v_exp_f32 v%d, -v%d" % (R0 + 1, R0 + 1)); nop(1)
A("v_add_f32 v%d, 1.0, v%d" % (R0 + 1, R0 + 1))
A("v_rcp_f32 v%d, v%d" % (R0 + 1, R0 + 1)); nop(1)
A("v_mul_f32 v%d, v%d, v%d" % (R0 + 1, R0 + 1, R0))
bf16r(R0 + 1, t_)
A("v_mov_b32 v%d, v%d" % (R0 + 2, R0 + 1)); nop(2)
A("v_permlane32_swap_b32 v%d, v%d" % (R0 + 1, R0 + 2)); nop(1)
A("v_mul_f32 v%d, v%d, v%d" % (R0, R0, R0 + 2))
bf16r(R0, t_)
A("v_lshlrev_b32 v%d, 16, v%d" % (vXO, vXO))
A("v_add_f32 v%d, v%d, v%d" % (R0, R0, vXO))
A("v_cvt_pk_bf16_f32 v%d, v%d, v%d" % (R0, R0, R0))
A("v_and_b32 v%d, 7, v2" % vA)
A("v_lshlrev_b32 v%d, 11, v%d" % (vA, vA))
A("v_bfe_u32 v%d, v2, 3, 2" % vB)
A("v_lshl_add_u32 v%d, v%d, 1, v%d" % (vA, vB, vA))
A("s_mov_b32 exec_hi, 0")
A("buffer_store_short v%d, v%d, %s, s%d offen" % (R0, vA, sr(rOUT, 4), sOUTOFF))
A("s_mov_b64 exec, -1")
C("workgroup 0 advances the epoch word for the next launch")
A("s_cmp_lg_u32 s%d, 0" % sWG)
A("s_cbranch_scc1 L_done")
A("v_mov_b32 v%d, s%d" % (vA, sTAG)); A("v_mov_b32 v%d, 0" % vB)
A("s_mov_b64 exec, 1")
A("buffer_store_dword v%d, v%d, %s, 0 offen sc1" % (vA, vB, sr(rWS, 4)))
LBL("L_done")
A("s_endpgm")
L.append('.section .rodata,"a"')
L.append(".p2align 6")
L.append(".amdhsa_kernel %s_kernel" % NAME)
L.append("  .amdhsa_next_free_vgpr 256")
L.append("  .amdhsa_next_free_sgpr 102")
L.append("  .amdhsa_accum_offset 256")
L.append("  .amdhsa_group_segment_fixed_size 0")
L.append("  .amdhsa_kernarg_size 96")
L.append("  .amdhsa_user_sgpr_count 2")
L.append("  .amdhsa_user_sgpr_kernarg_segment_ptr 1")
L.append("  .amdhsa_system_sgpr_workgroup_id_x 1")
L.append(".end_amdhsa_kernel")
print("\n".join(L))
sys.stderr.write("ops %d stamps %d\n" % (issued[0], nws[0]))
```

```python
import sys, os
NAME = "recurrent_scan__gqa_block_cached__glu_gated_glu__decode"
STAMP = os.environ.get("STAMP", "0") == "1"
WIN = int(os.environ.get("WIN", "6"))
EXTRA = int(os.environ.get("EXTRA", "2"))
GPOS = int(os.environ.get("GPOS", "8"))
WIN2 = int(os.environ.get("WIN2", "6"))
GSC = os.environ.get("GSC", "")
TB4 = int(os.environ.get("TB4", "4"))
SKIP = int(os.environ.get("SKIP", "8"))
PRIO = os.environ.get("PRIO", "0")
NOPUB = os.environ.get("NOPUB", "0") == "1"
NOCHK = os.environ.get("NOCHK", "0") == "1"
NOGATH = os.environ.get("NOGATH", "0") == "1"
def prio(hi_half_prio, lbl):
    A("s_cmp_ge_u32 s%d, 4" % sWAVE)
    A("s_cbranch_scc1 %s_a" % lbl)
    A("s_setprio %d" % (1 - hi_half_prio))
    A("s_branch %s_b" % lbl)
    LBL("%s_a" % lbl)
    A("s_setprio %d" % hi_half_prio)
    LBL("%s_b" % lbl)
NT = " nt"
L = []
def A(s): L.append("  " + s)
def LBL(s): L.append(s + ":")
def C(s): L.append("  ; " + s)
def nop(n):
    while n > 0:
        k = min(n, 16); A("s_nop %d" % (k - 1)); n -= k
def vr(a, n=1): return "v%d" % a if n == 1 else "v[%d:%d]" % (a, a + n - 1)
def sr(a, n=1): return "s%d" % a if n == 1 else "s[%d:%d]" % (a, a + n - 1)

WS_Q = 0x100000
WS_GU = 0x200000
WS_O = 0x400000
WS_ML = 0x600000
WS_S = 0x800000
WS_D = 0xA00000
WS_SIZE = 0x1000000
XN = 0x0000; QL = 0x4000; HL = 0x4800; OL = 0x5000; MX = 0x5800; LS = 0x5900; FS = 0x6000
TA = 0x7000; TB = 0x10000; TC = 0x19000
LDS_SIZE = 0x22000
sWG = 2; sWAVE = 3
sSELLO = 4; sSELHI = 5; sTAG = 6; sT0 = 7; sT1 = 8; sT2 = 9; sT3 = 10; sT4 = 11; sT5 = 12; sT6 = 13; sOUTOFF = 14; sCNT = 15
P = 16
pX, pK, pV, pWQ, pWO, pBX, pWG, pWU, pWD, pOUT, pDBG, pWS = [P + 2 * i for i in range(12)]
rX, rK, rV, rWQ, rGU, rWD, rWO, rWS, rOUT, rDBG = [40 + 4 * i for i in range(10)]
sA0 = 80
sLOG2E = 96; sSCALE = 97; sMASK = 95; sLO = 76; sHI = 77

def srd(r, p, nbytes):
    A("s_mov_b32 s%d, s%d" % (r, p)); A("s_and_b32 s%d, s%d, 0xffff" % (r + 1, p + 1))
    A("s_mov_b32 s%d, 0x%x" % (r + 2, nbytes)); A("s_mov_b32 s%d, 0x20000" % (r + 3))
nws = [0]
def wstamp():
    if not STAMP: return
    A("s_memrealtime s[98:99]"); A("s_waitcnt lgkmcnt(0)")
    A("s_mov_b32 s%d, s98" % (16 + nws[0])); nws[0] += 1
def wdump():
    if not STAMP: return
    A("s_lshl_b32 s%d, s%d, 3" % (sT0, sWG)); A("s_add_u32 s%d, s%d, s%d" % (sT0, sT0, sWAVE)); A("s_lshl_b32 s%d, s%d, 7" % (sT0, sT0))
    A("s_add_u32 s%d, s%d, 0xC00000" % (sT0, sT0))
    A("s_mov_b64 exec, 1")
    for i in range(nws[0]):
        A("v_mov_b32 v8, s%d" % (16 + i)); A("v_mov_b32 v9, %d" % (i * 4))
        A("buffer_store_dword v8, v9, %s, s%d offen" % (sr(rWS, 4), sT0)); nop(2)
    A("v_mov_b32 v8, s%d" % sCNT); A("v_mov_b32 v9, 124")
    A("buffer_store_dword v8, v9, %s, s%d offen" % (sr(rWS, 4), sT0)); nop(2)
    A("s_mov_b64 exec, -1")
def bf16r_pair(a, b, t):
    A("v_cvt_pk_bf16_f32 v%d, v%d, v%d" % (t, a, b))
    A("v_lshlrev_b32 v%d, 16, v%d" % (a, t))
    A("v_and_b32 v%d, 0xffff0000, v%d" % (b, t))
def bf16r(a, t):
    A("v_cvt_pk_bf16_f32 v%d, v%d, v%d" % (t, a, a))
    A("v_lshlrev_b32 v%d, 16, v%d" % (a, t))
def xlane_hi(op, x, ta, tb):
    for sw in ("v_permlane16_swap_b32", "v_permlane32_swap_b32"):
        A("v_mov_b32 v%d, v%d" % (ta, x)); A("v_mov_b32 v%d, v%d" % (tb, x)); nop(2)
        A("%s v%d, v%d" % (sw, ta, tb)); nop(1)
        A("%s v%d, v%d, v%d" % (op, x, ta, tb))
def xadd4(x, tmp, swaps):
    for sw in swaps:
        for r in range(4): A("v_mov_b32 v%d, v%d" % (tmp + r, x + r))
        nop(2)
        for r in range(4): A("%s v%d, v%d" % (sw, x + r, tmp + r))
        nop(1)
        for r in range(4): A("v_add_f32 v%d, v%d, v%d" % (x + r, x + r, tmp + r))
P16 = "v_permlane16_swap_b32"; P32 = "v_permlane32_swap_b32"
def xlane_row(op, x, t):
    for m in ("quad_perm:[1,0,3,2]", "quad_perm:[2,3,0,1]", "row_half_mirror", "row_mirror"):
        nop(2)
        A("%s_dpp v%d, v%d, v%d %s row_mask:0xf bank_mask:0xf" % (op, t, x, x, m))
        A("v_mov_b32 v%d, v%d" % (x, t))
def tile_mfma(rows, nrows, Areg, acc, tmp, first_zero=True):
    nb = nrows // 2
    def perms(j):
        t = tmp + 4 * (j & 1); q = j >> 1; sel = sSELHI if (j & 1) else sSELLO
        for p in range(nb):
            A("v_perm_b32 v%d, v%d, v%d, s%d" % (t + p, rows + 4 * (2 * p + 1) + q, rows + 4 * (2 * p) + q, sel))
    def mf(j):
        t = tmp + 4 * (j & 1)
        c = "0" if first_zero else vr(acc + 4 * j, 4)
        if nrows == 4:
            A("v_mfma_f32_16x16x16_bf16 %s, %s, %s, %s" % (vr(acc + 4 * j, 4), vr(Areg, 2), vr(t, 2), c))
        else:
            A("v_mfma_f32_16x16x32_bf16 %s, %s, %s, %s" % (vr(acc + 4 * j, 4), vr(Areg, 4), vr(t, 4), c))
    perms(0); perms(1)
    for j in range(8):
        mf(j)
        if j + 2 < 8: perms(j + 2)
def tile_store(acc, vaddr, lo, hi):
    nop(8)
    A("s_mov_b32 exec_lo, 0x%x" % lo); A("s_mov_b32 exec_hi, 0x%x" % hi)
    for j in range(8):
        A("ds_write_b128 v%d, %s offset:%d" % (vaddr, vr(acc + 4 * j, 4), j * 32))
    A("s_mov_b64 exec, -1")
def barrier():
    A("s_waitcnt lgkmcnt(0)"); A("s_barrier")
vTB0 = 246; vTB1 = 247
def embed4(x):
    for r in range(4): A("v_and_or_b32 v%d, v%d, s%d, v%d" % (x + r, x + r, sMASK, vTB0 + (r & 1)))
def embcheck(quads, acc, t1, t2, okl):
    if NOCHK:
        A("s_branch %s" % okl); return
    first = True
    for q in quads:
        for h in (0, 2):
            A("v_xor_b32 v%d, v%d, v%d" % (t1, q + h, vTB0)); A("v_xor_b32 v%d, v%d, v%d" % (t2, q + h + 1, vTB1))
            if first: A("v_or_b32 v%d, v%d, v%d" % (acc, t1, t2)); first = False
            else: A("v_or3_b32 v%d, v%d, v%d, v%d" % (acc, acc, t1, t2))
    A("v_and_b32 v%d, 0xff, v%d" % (acc, acc))
    A("v_cmp_ne_u32 vcc, 0, v%d" % acc)
    nop(1)
    A("s_cmp_eq_u64 vcc, 0")
    A("s_cbranch_scc1 %s" % okl)
def tagcheck(tags, mn, mx, okl):
    if NOCHK:
        A("s_branch %s" % okl); return
    A("v_min3_u32 v%d, v%d, v%d, v%d" % (mn, tags[0], tags[1], tags[1]))
    A("v_max3_u32 v%d, v%d, v%d, v%d" % (mx, tags[0], tags[1], tags[1]))
    for i in range(2, len(tags), 2):
        A("v_min3_u32 v%d, v%d, v%d, v%d" % (mn, mn, tags[i], tags[i + 1]))
        A("v_max3_u32 v%d, v%d, v%d, v%d" % (mx, mx, tags[i], tags[i + 1]))
    A("v_cmp_ne_u32 vcc, s%d, v%d" % (sTAG, mn))
    A("v_cmp_ne_u32 s[%d:%d], s%d, v%d" % (sT5, sT6, sTAG, mx))
    nop(1)
    A("s_or_b64 vcc, vcc, s[%d:%d]" % (sT5, sT6))
    A("s_cmp_eq_u64 vcc, 0")
    A("s_cbranch_scc1 %s" % okl)
def bounded_retry(lbl):
    A("s_sub_u32 s%d, s%d, 1" % (sCNT, sCNT))
    A("s_cmp_lg_u32 s%d, 0" % sCNT)
    A("s_cbranch_scc1 %s" % lbl)

issued = [0]
idx = {}
def LD(text, windowed=True, name=None):
    global WIN
    if windowed and issued[0] >= WIN:
        A("s_waitcnt vmcnt(%d)" % (WIN - 1))
    A(text); issued[0] += 1
    if name: idx[name] = issued[0]
def NEED(name, extra=""):
    A("s_waitcnt vmcnt(%d)%s" % (min(63, issued[0] - idx[name]), extra))
pend = []
def pop_issue(windowed=True):
    n, t = pend.pop(0); LD(t, windowed, n)
def issue_until(name):
    while name not in idx: pop_issue()
    while pend and issued[0] - (WIN - 1) < idx[name]: pop_issue()
def topup(n):
    for _ in range(n):
        if pend: pop_issue(False)

L.append("; @launch grid=(256,1,1) block=(512,1,1) lds=%d" % LDS_SIZE)
L.append('.amdgcn_target "amdgcn-amd-amdhsa--gfx950"')
L.append(".text")
L.append(".globl %s_kernel" % NAME)
L.append(".p2align 8")
L.append(".type %s_kernel,@function" % NAME)
LBL("%s_kernel" % NAME)
A("s_cmp_ge_u32 s2, 256")
A("s_cbranch_scc1 L_done")
A("s_load_dwordx16 s[16:31], s[0:1], 0")
A("s_load_dwordx8 s[32:39], s[0:1], 64")
A("v_lshrrev_b32 v1, 6, v0")
A("v_and_b32 v2, 63, v0")
A("v_and_b32 v3, 15, v0")
A("v_readfirstlane_b32 s%d, v1" % sWAVE)
A("v_lshrrev_b32 v4, 4, v2")
A("s_mov_b32 s%d, 0x05040100" % sSELLO)
A("s_mov_b32 s%d, 0x07060302" % sSELHI)
A("s_mov_b32 s%d, 0x3fb8aa3b" % sLOG2E)
A("s_mov_b32 s%d, 0x3db504f3" % sSCALE)
A("s_mov_b32 s%d, 0xffffff00" % sMASK)
A("s_mov_b32 s%d, 400000" % sCNT)
A("s_waitcnt lgkmcnt(0)")
if STAMP: A("s_memrealtime s[100:101]")
A("s_load_dword s%d, s[%d:%d], 0" % (sTAG, pWS, pWS + 1))
srd(rX, pX, 16384); srd(rWQ, pWQ, 8388608)
if PRIO in ("1", "2"): prio(1, "L_pr0")

WR = 16; GR = 32; KR = 64; VR_ = 128; ACC = 192; SC = 224; QF = 240; TMP = 8
DR = 16; WOR = 32; QG = 224; HG = 48; XR = 192; XF = 200; AF = 240; vXO = 248
vA = 5; vB = 6; vC = 7; vGU = 1; vKA = 0
s_ = 8; t_ = 9; u_ = 10; m_ = 11; r_ = 12; sd_ = 13
vVA = 249; vDA = 250; vL16 = 251; vRD = 252; vST = 253; vAF = 254; vRD2 = 255
A("v_lshlrev_b32 v%d, 4, v2" % vL16)
A("s_lshl_b32 s%d, s%d, 11" % (sA0 + 14, sWAVE))
LD("buffer_load_dwordx4 %s, v%d, %s, s%d offen" % (vr(XR, 4), vL16, sr(rX, 4), sA0 + 14))
LD("buffer_load_dwordx4 %s, v%d, %s, s%d offen offset:1024" % (vr(XR + 4, 4), vL16, sr(rX, 4), sA0 + 14), name="X")
A("v_lshrrev_b32 v%d, 3, v3" % vB)
A("v_lshlrev_b32 v%d, 2, v%d" % (vB, vB))
A("v_add_u32 v%d, v%d, v4" % (vB, vB))
A("v_and_b32 v%d, 7, v3" % vC)
A("v_mul_u32_u24 v%d, 57344, v%d" % (vGU, vB))
A("v_lshl_add_u32 v%d, v%d, 4, v%d" % (vGU, vC, vGU))
A("v_lshlrev_b32 v%d, 15, v%d" % (vB, vB))
A("v_lshl_add_u32 v%d, v%d, 4, v%d" % (vB, vC, vB))
A("s_lshr_b32 s%d, s%d, 6" % (sT0, sWG))
A("s_lshl_b32 s%d, s%d, 3" % (sT0, sT0))
A("s_add_u32 s%d, s%d, s%d" % (sT0, sT0, sWAVE))
A("s_lshl_b32 s%d, s%d, 18" % (sT0, sT0))
A("s_and_b32 s%d, s%d, 63" % (sT1, sWG))
A("s_lshl_b32 s%d, s%d, 7" % (sT1, sT1))
A("s_add_u32 s%d, s%d, s%d" % (sA0, sT0, sT1))
for i in range(1, 4): A("s_add_u32 s%d, s%d, %d" % (sA0 + i, sA0, i * 8192))
for i in range(4):
    LD("buffer_load_dwordx4 %s, v%d, %s, s%d offen%s" % (vr(WR + 4 * i, 4), vB, sr(rWQ, 4), sA0 + i, NT), windowed=False, name="W%d" % i)
srd(rK, pK, 33554432); srd(rV, pV, 33554432)
A("s_and_b32 s%d, s%d, 1" % (sT0, sWG))
A("s_cmp_eq_u32 s%d, 0" % sT0)
A("s_cselect_b32 s%d, s%d, s%d" % (rGU, pWG, pWU))
A("s_cselect_b32 s%d, s%d, s%d" % (rGU + 1, pWG + 1, pWU + 1))
A("s_and_b32 s%d, s%d, 0xffff" % (rGU + 1, rGU + 1))
A("s_mov_b32 s%d, 7340032" % (rGU + 2)); A("s_mov_b32 s%d, 0x20000" % (rGU + 3))
srd(rWD, pWD, 7340032); srd(rWO, pWO, 8388608); srd(rWS, pWS, WS_SIZE); srd(rOUT, pOUT, 16384)
A("s_and_b32 s%d, s%d, 31" % (sLO, sWG))
A("s_lshr_b32 s%d, s%d, 5" % (sHI, sWG))
A("s_lshr_b32 s%d, s%d, 2" % (sT0, sLO))
A("s_lshl_b32 s%d, s%d, 11" % (sT0, sT0))
A("s_lshl_b32 s%d, s%d, 8" % (sT1, sHI))
A("s_add_u32 s%d, s%d, s%d" % (sT0, sT0, sT1))
A("s_and_b32 s%d, s%d, 3" % (sT1, sLO))
A("s_lshl_b32 s%d, s%d, 6" % (sT1, sT1))
A("s_add_u32 s%d, s%d, s%d" % (sOUTOFF, sT0, sT1))
A("v_and_b32 v%d, 31, v2" % vC)
A("v_lshlrev_b32 v%d, 1, v%d" % (vC, vC))
LD("buffer_load_ushort v%d, v%d, %s, s%d offen" % (vXO, vC, sr(rX, 4), sOUTOFF), windowed=False)
A("s_lshr_b32 s%d, s%d, 1" % (sT0, sWG))
A("s_and_b32 s%d, s%d, 1" % (sT1, sT0))
A("s_lshr_b32 s%d, s%d, 1" % (sT2, sT0))
A("s_lshl_b32 s%d, s%d, 3" % (sT1, sT1))
A("s_add_u32 s%d, s%d, s%d" % (sT1, sT1, sWAVE))
A("s_mul_i32 s%d, s%d, %d" % (sT1, sT1, 64 * 7168))
A("s_lshl_b32 s%d, s%d, 7" % (sT2, sT2))
A("s_add_u32 s%d, s%d, s%d" % (sA0 + 4, sT1, sT2))
A("s_cmp_ge_u32 s%d, 224" % sWG)
A("s_cselect_b32 s%d, 7340032, s%d" % (sA0 + 4, sA0 + 4))
for i in range(1, 8): A("s_add_u32 s%d, s%d, %d" % (sA0 + 4 + i, sA0 + 4, i * 7168))
A("v_lshrrev_b32 v%d, 2, v3" % vKA)
A("v_lshlrev_b32 v%d, 3, v%d" % (vKA, vKA))
A("v_and_b32 v%d, 3, v3" % vC)
A("v_add_u32 v%d, v%d, v%d" % (vKA, vKA, vC))
A("v_lshlrev_b32 v%d, 8, v%d" % (vKA, vKA))
A("v_lshl_add_u32 v%d, v4, 4, v%d" % (vKA, vKA))
sKB = sA0 + 12
A("s_lshl_b32 s%d, s%d, 20" % (sKB, sLO))
A("s_lshl_b32 s%d, s%d, 17" % (sT0, sHI))
A("s_add_u32 s%d, s%d, s%d" % (sKB, sKB, sT0))
A("s_lshl_b32 s%d, s%d, 14" % (sT0, sWAVE))
A("s_add_u32 s%d, s%d, s%d" % (sKB, sKB, sT0))
A("s_add_u32 s%d, s%d, 8192" % (sKB + 1, sKB))
A("v_lshlrev_b32 v%d, 11, v4" % vVA)
A("v_lshl_add_u32 v%d, v3, 4, v%d" % (vVA, vVA))
A("v_lshlrev_b32 v%d, 13, v4" % vDA)
A("v_lshl_add_u32 v%d, v3, 4, v%d" % (vDA, vDA))
pend += [("G%d" % i, "buffer_load_dwordx4 %s, v%d, %s, s%d offen%s" % (vr(GR + 4 * i, 4), vGU, sr(rGU, 4), sA0 + 4 + i, NT)) for i in range(8)]
pend += [("K%d" % (8 * u + 4 * T + d), "buffer_load_dwordx4 %s, v%d, %s, s%d offen offset:%d%s" % (vr(KR + 16 * (2 * u + T) + 4 * d, 4), vKA, sr(rK, 4), sKB + u, T * 1024 + d * 64, NT))
         for u in range(2) for T in range(2) for d in range(4)]
vl = [("V%d" % (8 * u + e), "buffer_load_dwordx4 %s, v%d, %s, s%d offen offset:%d%s" % (vr(VR_ + 32 * u + 4 * e, 4), vVA, sr(rV, 4), sKB + u, e * 256, NT))
         for u in range(2) for e in range(8)]
pend += vl[:GPOS]
issue_until("X"); topup(EXTRA)
C("layernorm of row = wave")
NEED("X")
if STAMP:
    A("s_waitcnt lgkmcnt(0)"); A("s_mov_b32 s16, s100"); nws[0] += 1
wstamp()
for q in range(8):
    A("v_lshlrev_b32 v%d, 16, v%d" % (XF + 2 * q, XR + q))
    A("v_and_b32 v%d, 0xffff0000, v%d" % (XF + 2 * q + 1, XR + q))
A("v_add_f32 v%d, v%d, v%d" % (s_, XF, XF + 1))
for i in range(2, 16): A("v_add_f32 v%d, v%d, v%d" % (s_, s_, XF + i))
xlane_row("v_add_f32", s_, t_); xlane_hi("v_add_f32", s_, t_, u_)
A("v_mul_f32 v%d, 0x3a800000, v%d" % (m_, s_))
A("v_mov_b32 v%d, 0" % s_)
for i in range(16):
    A("v_sub_f32 v%d, v%d, v%d" % (t_, XF + i, m_))
    A("v_fmac_f32 v%d, v%d, v%d" % (s_, t_, t_))
xlane_row("v_add_f32", s_, t_); xlane_hi("v_add_f32", s_, t_, u_)
A("v_mul_f32 v%d, 0x3a800000, v%d" % (s_, s_))
bf16r(m_, t_); bf16r(s_, t_)
A("v_add_f32 v%d, 0x3727c5ac, v%d" % (s_, s_)); bf16r(s_, t_)
A("v_sqrt_f32 v%d, v%d" % (sd_, s_)); nop(1); bf16r(sd_, t_)
A("v_rcp_f32 v%d, v%d" % (r_, sd_)); nop(1)
for i in range(16): A("v_sub_f32 v%d, v%d, v%d" % (XF + i, XF + i, m_))
for q in range(8): bf16r_pair(XF + 2 * q, XF + 2 * q + 1, t_)
for i in range(16):
    A("v_mul_f32 v%d, v%d, v%d" % (t_, XF + i, r_))
    A("v_fma_f32 v%d, -v%d, v%d, v%d" % (u_, t_, sd_, XF + i))
    A("v_fma_f32 v%d, v%d, v%d, v%d" % (XF + i, u_, r_, t_))
for q in range(8): A("v_cvt_pk_bf16_f32 v%d, v%d, v%d" % (XR + q, XF + 2 * q, XF + 2 * q + 1))
A("v_add_u32 v%d, s%d, v%d" % (vA, sA0 + 14, vL16))
A("ds_write_b128 v%d, %s offset:%d" % (vA, vr(XR, 4), XN))
A("ds_write_b128 v%d, %s offset:%d" % (vA, vr(XR + 4, 4), XN + 1024))
barrier()
A("s_add_u32 s%d, s%d, 0x9e3779b9" % (sTAG, sTAG))
A("s_and_b32 s%d, s%d, 0xff" % (sT0, sTAG))
A("s_bfe_u32 s%d, s%d, 0x80008" % (sT1, sTAG))
A("v_mov_b32 v%d, s%d" % (vTB0, sT0)); A("v_mov_b32 v%d, s%d" % (vTB1, sT1))
wstamp()
C("phase A: wq half tile (two k-sets in A rows 0-7 / 8-15)")
A("v_and_b32 v%d, 7, v3" % vA)
A("v_lshlrev_b32 v%d, 11, v%d" % (vA, vA))
A("v_lshrrev_b32 v%d, 3, v3" % vB)
A("v_lshlrev_b32 v%d, 2, v%d" % (vB, vB))
A("v_add_u32 v%d, v%d, v4" % (vB, vB))
A("v_lshl_add_u32 v%d, v%d, 3, v%d" % (t_, vB, vA))
A("s_lshr_b32 s%d, s%d, 6" % (sT0, sWG))
A("s_lshl_b32 s%d, s%d, 3" % (sT0, sT0))
A("s_add_u32 s%d, s%d, s%d" % (sT0, sT0, sWAVE))
A("s_lshl_b32 s%d, s%d, 6" % (sT0, sT0))
A("v_add_u32 v%d, s%d, v%d" % (t_, sT0, t_))
A("ds_read_b64 %s, v%d offset:%d" % (vr(AF, 2), t_, XN))
A("v_lshl_add_u32 v%d, v%d, 4, v%d" % (u_, vB, vA))
A("s_lshr_b32 s%d, s%d, 1" % (sT0, sWG))
A("s_and_b32 s%d, s%d, 1" % (sT0, sT0))
A("s_lshl_b32 s%d, s%d, 3" % (sT0, sT0))
A("s_add_u32 s%d, s%d, s%d" % (sT0, sT0, sWAVE))
A("s_lshl_b32 s%d, s%d, 7" % (sT0, sT0))
A("v_add_u32 v%d, s%d, v%d" % (u_, sT0, u_))
AF2 = 242
A("ds_read_b128 %s, v%d offset:%d" % (vr(AF2, 4), u_, XN))
A("v_lshrrev_b32 v%d, 1, v4" % vA)
A("s_lshl_b32 s%d, s%d, 1" % (sT0, sWAVE))
A("v_add_u32 v%d, s%d, v%d" % (vA, sT0, vA))
A("v_mul_u32_u24 v%d, 2176, v%d" % (vA, vA))
A("v_and_b32 v%d, 7, v3" % vB)
A("v_mul_u32_u24 v%d, 272, v%d" % (vB, vB))
A("v_add_u32 v%d, v%d, v%d" % (vA, vA, vB))
A("v_and_b32 v%d, 1, v4" % vB)
A("v_lshl_add_u32 v%d, v%d, 4, v%d" % (vB, vB, vA))
A("v_add_u32 v%d, %d, v%d" % (vA, TA, vB))
A("v_mul_u32_u24 v%d, 272, v3" % vC)
A("v_lshl_add_u32 v%d, v4, 4, v%d" % (vC, vC))
A("s_mul_i32 s%d, s%d, 4352" % (sT0, sWAVE))
A("v_add_u32 v%d, s%d, v%d" % (vC, sT0, vC))
A("v_and_b32 v%d, 31, v2" % t_)
A("v_lshrrev_b32 v%d, 1, v%d" % (vRD, t_))
A("v_lshlrev_b32 v%d, 4, v%d" % (vRD, vRD))
A("v_lshl_add_u32 v%d, v%d, 7, v%d" % (vRD, t_, vRD))
A("v_lshrrev_b32 v%d, 5, v2" % u_)
A("v_mul_u32_u24 v%d, %d, v%d" % (u_, 4 * 4352, u_))
A("v_add_u32 v%d, v%d, v%d" % (vRD, vRD, u_))
A("s_lshl_b32 s%d, s%d, 2" % (sT0, sWAVE))
A("v_add_u32 v%d, s%d, v%d" % (vRD, sT0, vRD))
A("v_lshrrev_b32 v%d, 1, v3" % vRD2)
A("v_lshlrev_b32 v%d, 4, v%d" % (vRD2, vRD2))
A("v_lshl_add_u32 v%d, v3, 7, v%d" % (vRD2, vRD2))
A("v_mul_u32_u24 v%d, %d, v4" % (u_, 4 * 2176))
A("v_add_u32 v%d, v%d, v%d" % (vRD2, vRD2, u_))
A("v_add_u32 v%d, s%d, v%d" % (vRD2, sT0, vRD2))
A("s_lshl_b32 s%d, s%d, 9" % (sT0, sWAVE))
A("v_lshlrev_b32 v%d, 4, v%d" % (vST, t_))
A("v_add_u32 v%d, s%d, v%d" % (vST, sT0, vST))
issue_until("W3"); topup(EXTRA)
NEED("W3", " lgkmcnt(0)")
tile_mfma(WR, 4, AF, ACC, TMP)
tile_store(ACC, vA, 0x00ff00ff, 0xff00ff00)
barrier()
wstamp()
RB = 224
def row_reduce(T, vrd, stride, swaps):
    A("v_add_u32 v%d, %d, v%d" % (vA, T, vrd))
    for t in range(4):
        for j in range(4):
            A("ds_read_b32 v%d, v%d offset:%d" % (RB + 4 * t + j, vA, t * stride + 32 * j))
    A("s_waitcnt lgkmcnt(0)")
    for j in range(4):
        A("v_add_f32 v%d, v%d, v%d" % (RB + j, RB + j, RB + 4 + j))
        A("v_add_f32 v%d, v%d, v%d" % (RB + 8 + j, RB + 8 + j, RB + 12 + j))
    for j in range(4): A("v_add_f32 v%d, v%d, v%d" % (RB + j, RB + j, RB + 8 + j))
    xadd4(RB, RB + 4, swaps)
    embed4(RB)
def pub64(T, soff):
    if NOPUB: A("s_mov_b32 s%d, 0x%x" % (soff, WS_SIZE))
    row_reduce(T, vRD2, 2176, (P16, P32))
    A("s_mov_b64 exec, 0xffff")
    LD("buffer_store_dwordx4 %s, v%d, %s, s%d offen sc1" % (vr(RB, 4), vL16, sr(rWS, 4), soff), windowed=False)
    A("s_mov_b64 exec, -1"); nop(1)
def pub128(T, soff):
    if NOPUB: A("s_mov_b32 s%d, 0x%x" % (soff, WS_SIZE))
    row_reduce(T, vRD, 4352, (P32,))
    A("s_mov_b32 exec_hi, 0")
    LD("buffer_store_dwordx4 %s, v%d, %s, s%d offen sc1" % (vr(RB, 4), vST, sr(rWS, 4), soff), windowed=False)
    A("s_mov_b64 exec, -1"); nop(1)
C("publish q partial row b = wave")
A("s_lshr_b32 s%d, s%d, 6" % (sT0, sWG))
A("s_lshl_b32 s%d, s%d, 3" % (sT0, sT0))
A("s_add_u32 s%d, s%d, s%d" % (sT0, sT0, sWAVE))
A("s_lshl_b32 s%d, s%d, 14" % (sT0, sT0))
A("s_and_b32 s%d, s%d, 63" % (sT1, sWG))
A("s_lshl_b32 s%d, s%d, 8" % (sT1, sT1))
A("s_add_u32 s%d, s%d, s%d" % (sT0, sT0, sT1))
A("s_add_u32 s%d, s%d, 0x%x" % (sA0, sT0, WS_Q))
while "G7" not in idx: pop_issue(False)
pub64(TA, sA0)
topup(SKIP)
C("phase B: gate/up tile (two k-sets)")
A("v_add_u32 v%d, %d, v%d" % (vA, TB, vB))
NEED("G7")
tile_mfma(GR, 8, AF2, ACC, TMP)
tile_store(ACC, vA, 0x00ff00ff, 0xff00ff00)
barrier()
wstamp()
C("publish g/u partial row b = wave (workgroups >= 224 carry no unit: their store is dropped by the range check)")
A("s_and_b32 s%d, s%d, 3" % (sT0, sWG))
A("s_and_b32 s%d, s%d, 1" % (sT1, sT0))
A("s_lshr_b32 s%d, s%d, 1" % (sT2, sT0))
A("s_lshl_b32 s%d, s%d, 1" % (sT1, sT1))
A("s_add_u32 s%d, s%d, s%d" % (sT1, sT1, sT2))
A("s_lshl_b32 s%d, s%d, 3" % (sT1, sT1))
A("s_add_u32 s%d, s%d, s%d" % (sT1, sT1, sWAVE))
A("s_mul_i32 s%d, s%d, 14336" % (sT1, sT1))
A("s_lshr_b32 s%d, s%d, 2" % (sT3, sWG))
A("s_lshl_b32 s%d, s%d, 8" % (sT3, sT3))
A("s_add_u32 s%d, s%d, s%d" % (sT1, sT1, sT3))
A("s_add_u32 s%d, s%d, 0x%x" % (sA0, sT1, WS_GU))
A("s_cmp_ge_u32 s%d, 224" % sWG)
A("s_cselect_b32 s%d, 0x%x, s%d" % (sA0, WS_SIZE, sA0))
pub64(TB, sA0)
WIN = WIN2
if PRIO == "3": prio(1, "L_pr1")
C("gathers: q head = wave of (b = w>>5, hkv = (w>>3)&3), lane (quad = lane&31, ks = 2t + (lane>>5)); g/u row b = wave, lane (quad, ks = lane>>5)")
A("s_mov_b32 s%d, s%d" % (sT0, sLO))
A("s_lshl_b32 s%d, s%d, 12" % (sT1, sLO))
A("s_lshl_b32 s%d, s%d, 9" % (sT2, sWAVE))
A("s_add_u32 s%d, s%d, s%d" % (sT1, sT1, sT2))
A("s_add_u32 s%d, s%d, 0x%x" % (sA0, sT1, WS_Q))
A("s_add_u32 s%d, s%d, 0x40000" % (sA0 + 1, sA0))
A("s_mul_i32 s%d, s%d, 448" % (sT1, sT0))
A("s_mul_i32 s%d, s%d, 14336" % (sT2, sWAVE))
A("s_add_u32 s%d, s%d, s%d" % (sT1, sT1, sT2))
A("s_add_u32 s%d, s%d, 0x%x" % (sA0 + 2, sT1, WS_GU))
A("s_add_u32 s%d, s%d, %d" % (sA0 + 3, sA0 + 2, 16 * 14336))
vQA = 1; vHA = 0
if NOGATH:
    for k in range(4): A("s_mov_b32 s%d, 0x%x" % (sA0 + k, WS_SIZE))
vQA = 14; vHA = 1
A("v_and_b32 v%d, 31, v2" % t_)
A("v_lshrrev_b32 v%d, 5, v2" % u_)
A("v_lshlrev_b32 v%d, 17, v%d" % (vQA, u_))
A("v_lshl_add_u32 v%d, v%d, 4, v%d" % (vQA, t_, vQA))
A("v_min_u32 v%d, 27, v%d" % (t_, t_))
A("v_mul_u32_u24 v%d, %d, v%d" % (vHA, 8 * 14336, u_))
A("v_lshl_add_u32 v%d, v%d, 4, v%d" % (vHA, t_, vHA))
gl = [("QG%d" % t, "buffer_load_dwordx4 %s, v%d, %s, s%d offen" % (vr(QG + 4 * t, 4), vQA, sr(rWS, 4), sA0 + t)) for t in range(2)]
gl += [("HG%d" % m, "buffer_load_dwordx4 %s, v%d, %s, s%d offen" % (vr(HG + 4 * m, 4), vHA, sr(rWS, 4), sA0 + 2 + m)) for m in range(2)]
pend += [(n, t + GSC) for n, t in gl[:2]] + vl[GPOS:] + [(n, t + GSC) for n, t in gl[2:]]
sDW = 34 if STAMP else 16
A("s_mov_b32 s%d, s%d" % (sT0, sLO))
A("s_lshl_b32 s%d, s%d, 8" % (sT1, sHI))
A("s_lshl_b32 s%d, s%d, 15" % (sT2, sWAVE))
A("s_add_u32 s%d, s%d, s%d" % (sT1, sT1, sT2))
A("s_mul_i32 s%d, s%d, %d" % (sT3, sT0, 112 * 2048))
A("s_add_u32 s%d, s%d, s%d" % (sDW, sT3, sT1))
A("s_cmp_eq_u32 s%d, 7" % sWAVE)
A("s_cselect_b32 s%d, 7340032, s%d" % (sDW, sDW))
A("s_add_u32 s%d, s%d, 4096" % (sDW + 1, sDW))
A("s_lshl_b32 s%d, s%d, 18" % (sT3, sT0))
A("s_add_u32 s%d, s%d, s%d" % (sDW + 2, sT3, sT1))
A("s_add_u32 s%d, s%d, 4096" % (sDW + 3, sDW + 2))
pend += [("D%d" % t, "buffer_load_dwordx4 %s, v%d, %s, s%d offen offset:%d%s" % (vr(DR + 4 * t, 4), vDA, sr(rWD, 4), sDW + (t >> 1), (t & 1) * 2048, NT)) for t in range(4)]
pend += [("O%d" % t, "buffer_load_dwordx4 %s, v%d, %s, s%d offen offset:%d%s" % (vr(WOR + 4 * t, 4), vDA, sr(rWO, 4), sDW + 2 + (t >> 1), (t & 1) * 2048, NT)) for t in range(4)]
topup(SKIP)
issue_until("QG1"); topup(EXTRA)
NEED("QG1")
wstamp()
embcheck([QG, QG + 4], s_, t_, u_, "L_g_ok")
LBL("L_g_retry")
for n, t in gl[:2]: A(t + " sc1")
A("s_waitcnt vmcnt(0)")
embcheck([QG, QG + 4], s_, t_, u_, "L_g_ok")
bounded_retry("L_g_retry")
LBL("L_g_ok")
wstamp()
C("q -> QL[head = wave][quad]")
XT = 192
for j in range(4): A("v_add_f32 v%d, v%d, v%d" % (QG + j, QG + j, QG + 4 + j))
xadd4(QG, XT, (P32,))
A("v_cvt_pk_bf16_f32 v%d, v%d, v%d" % (QG, QG, QG + 1))
A("v_cvt_pk_bf16_f32 v%d, v%d, v%d" % (QG + 1, QG + 2, QG + 3))
A("v_lshlrev_b32 v%d, 3, v2" % vA)
A("s_lshl_b32 s%d, s%d, 8" % (sT0, sWAVE))
A("v_add_u32 v%d, s%d, v%d" % (vA, sT0, vA))
A("s_mov_b32 exec_hi, 0")
A("ds_write_b64 v%d, %s offset:%d" % (vA, vr(QG, 2), QL))
A("s_mov_b64 exec, -1")
topup(TB4)
barrier()
wstamp()
if PRIO in ("2", "3"): A("s_setprio 0")
C("QK^T")
A("v_and_b32 v%d, 7, v3" % vA)
A("v_lshlrev_b32 v%d, 8, v%d" % (vA, vA))
A("v_lshl_add_u32 v%d, v4, 4, v%d" % (vA, vA))
QF4 = 192
for d in range(4): A("ds_read_b128 %s, v%d offset:%d" % (vr(QF4 + 4 * d, 4), vA, QL + 64 * d))
for d in range(4):
    A("s_waitcnt lgkmcnt(%d)" % (3 - d))
    for t in range(4):
        c = "0" if d == 0 else vr(SC + 4 * t, 4)
        A("v_mfma_f32_16x16x32_bf16 %s, %s, %s, %s" % (vr(SC + 4 * t, 4), vr(KR + 16 * t + 4 * d, 4), vr(QF4 + 4 * d, 4), c))
topup(EXTRA)
nop(8)
C("scores: bf16 round, scale, bf16 round; max")
for q in range(8): bf16r_pair(SC + 2 * q, SC + 2 * q + 1, t_)
for i in range(16): A("v_mul_f32 v%d, s%d, v%d" % (SC + i, sSCALE, SC + i))
for q in range(8): bf16r_pair(SC + 2 * q, SC + 2 * q + 1, t_)
A("v_max3_f32 v%d, v%d, v%d, v%d" % (m_, SC, SC + 1, SC + 2))
for i in range(3, 15, 2): A("v_max3_f32 v%d, v%d, v%d, v%d" % (m_, m_, SC + i, SC + i + 1))
A("v_max_f32 v%d, v%d, v%d" % (m_, m_, SC + 15))
xlane_hi("v_max_f32", m_, t_, u_)
A("v_lshlrev_b32 v%d, 5, v3" % vA)
A("s_lshl_b32 s%d, s%d, 2" % (sT0, sWAVE))
A("v_add_u32 v%d, s%d, v%d" % (vA, sT0, vA))
A("s_mov_b64 exec, 0xff")
A("ds_write_b32 v%d, v%d offset:%d" % (vA, m_, MX))
A("s_mov_b64 exec, -1")
topup(EXTRA)
barrier()
wstamp()
PF = 64
A("v_and_b32 v%d, 7, v3" % vB)
A("v_lshlrev_b32 v%d, 5, v%d" % (vB, vB))
A("ds_read_b128 %s, v%d offset:%d" % (vr(PF, 4), vB, MX))
A("ds_read_b128 %s, v%d offset:%d" % (vr(PF + 4, 4), vB, MX + 16))
A("s_waitcnt lgkmcnt(0)")
A("v_max3_f32 v%d, v%d, v%d, v%d" % (m_, PF, PF + 1, PF + 2))
A("v_max3_f32 v%d, v%d, v%d, v%d" % (m_, m_, PF + 3, PF + 4))
A("v_max3_f32 v%d, v%d, v%d, v%d" % (m_, m_, PF + 5, PF + 6))
A("v_max_f32 v%d, v%d, v%d" % (m_, m_, PF + 7))
A("v_mul_f32 v%d, s%d, v%d" % (m_, sLOG2E, m_))
for i in range(16): A("v_fma_f32 v%d, v%d, s%d, -v%d" % (SC + i, SC + i, sLOG2E, m_))
for i in range(16): A("v_exp_f32 v%d, v%d" % (SC + i, SC + i))
nop(1)
A("v_add_f32 v%d, v%d, v%d" % (s_, SC, SC + 1))
for i in range(2, 16): A("v_add_f32 v%d, v%d, v%d" % (s_, s_, SC + i))
for q in range(8): A("v_cvt_pk_bf16_f32 v%d, v%d, v%d" % (PF + q, SC + 2 * q, SC + 2 * q + 1))
xlane_hi("v_add_f32", s_, t_, u_)
A("s_mov_b64 exec, 0xff")
A("ds_write_b32 v%d, v%d offset:%d" % (vA, s_, LS))
A("s_mov_b64 exec, -1")
C("PV")
issue_until("V7")
NEED("V7")
tile_mfma(VR_, 8, PF, ACC, TMP, True)
issue_until("V15")
while pend: pop_issue(False)
NEED("V15")
wstamp()
tile_mfma(VR_ + 32, 8, PF + 4, ACC, TMP, False)
C("h = bf16(bf16(sigmoid(g)) * u) -> HL[b = wave][quad] (quads >= 28 zero)")
NEED("HG1")
embcheck([HG, HG + 4], s_, t_, u_, "L_h_ok")
LBL("L_h_retry")
for n, t in gl[2:]: A(t + " sc1")
A("s_waitcnt vmcnt(0)")
embcheck([HG, HG + 4], s_, t_, u_, "L_h_ok")
bounded_retry("L_h_retry")
LBL("L_h_ok")
xadd4(HG, 56, (P32,)); xadd4(HG + 4, 56, (P32,))
for q in range(4): bf16r_pair(HG + 2 * q, HG + 2 * q + 1, t_)
for j in range(4): A("v_mul_f32 v%d, s%d, v%d" % (HG + j, sLOG2E, HG + j))
for j in range(4): A("v_exp_f32 v%d, -v%d" % (HG + j, HG + j))
nop(1)
for j in range(4): A("v_add_f32 v%d, 1.0, v%d" % (HG + j, HG + j))
for j in range(4): A("v_rcp_f32 v%d, v%d" % (HG + j, HG + j))
nop(1)
bf16r_pair(HG, HG + 1, t_); bf16r_pair(HG + 2, HG + 3, t_)
for j in range(4): A("v_mul_f32 v%d, v%d, v%d" % (HG + j, HG + j, HG + 4 + j))
A("v_cmp_gt_u32 vcc, 28, v2")
A("v_cvt_pk_bf16_f32 v%d, v%d, v%d" % (HG, HG, HG + 1))
A("v_cvt_pk_bf16_f32 v%d, v%d, v%d" % (HG + 1, HG + 2, HG + 3))
A("v_lshlrev_b32 v%d, 3, v2" % vA)
A("s_lshl_b32 s%d, s%d, 8" % (sT0, sWAVE))
A("v_add_u32 v%d, s%d, v%d" % (vA, sT0, vA))
A("v_cndmask_b32 v%d, 0, v%d, vcc" % (HG, HG))
A("v_cndmask_b32 v%d, 0, v%d, vcc" % (HG + 1, HG + 1))
A("s_mov_b32 exec_hi, 0")
A("ds_write_b64 v%d, %s offset:%d" % (vA, vr(HG, 2), HL))
A("s_mov_b64 exec, -1")
A("v_add_u32 v%d, %d, v%d" % (vA, TC, vC))
tile_store(ACC, vA, 0xffffffff, 0)
barrier()
wstamp()
C("publish attention partial row head = wave, and {M,L} of that head")
MB = 72
A("s_lshl_b32 s%d, s%d, 15" % (sT0, sLO))
A("s_lshl_b32 s%d, s%d, 12" % (sT1, sHI))
A("s_add_u32 s%d, s%d, s%d" % (sT0, sT0, sT1))
A("s_add_u32 s%d, s%d, 0x%x" % (sA0 + 4, sT0, WS_O))
A("s_lshl_b32 s%d, s%d, 5" % (sT0, sWAVE))
A("v_mov_b32 v%d, s%d" % (vB, sT0))
A("ds_read_b128 %s, v%d offset:%d" % (vr(MB, 4), vB, LS))
A("ds_read_b128 %s, v%d offset:%d" % (vr(MB + 4, 4), vB, LS + 16))
A("ds_read_b128 %s, v%d offset:%d" % (vr(MB + 8, 4), vB, MX))
A("ds_read_b128 %s, v%d offset:%d" % (vr(MB + 12, 4), vB, MX + 16))
pub128(TC, sA0 + 4)
A("v_add_f32 v%d, v%d, v%d" % (MB + 18, MB, MB + 1))
for i in range(2, 8): A("v_add_f32 v%d, v%d, v%d" % (MB + 18, MB + 18, MB + i))
A("v_max3_f32 v%d, v%d, v%d, v%d" % (MB + 16, MB + 8, MB + 9, MB + 10))
A("v_max3_f32 v%d, v%d, v%d, v%d" % (MB + 16, MB + 16, MB + 11, MB + 12))
A("v_max3_f32 v%d, v%d, v%d, v%d" % (MB + 16, MB + 16, MB + 13, MB + 14))
A("v_max_f32 v%d, v%d, v%d" % (MB + 16, MB + 16, MB + 15))
A("v_mov_b32 v%d, s%d" % (MB + 17, sTAG)); A("v_mov_b32 v%d, s%d" % (MB + 19, sTAG))
A("s_lshl_b32 s%d, s%d, 10" % (sT0, sLO))
A("s_lshl_b32 s%d, s%d, 4" % (sT1, sHI))
A("s_add_u32 s%d, s%d, s%d" % (sT0, sT0, sT1))
A("s_lshl_b32 s%d, s%d, 7" % (sT1, sWAVE))
A("s_add_u32 s%d, s%d, s%d" % (sT0, sT0, sT1))
A("s_add_u32 s%d, s%d, 0x%x" % (sA0 + 5, sT0, WS_ML))
A("v_mov_b32 v%d, 0" % vB)
A("s_mov_b64 exec, 1")
LD("buffer_store_dwordx4 %s, v%d, %s, s%d offen sc1" % (vr(MB + 16, 4), vB, sr(rWS, 4), sA0 + 5), windowed=False)
A("s_mov_b64 exec, -1")
C("phase D: down half tile")
A("v_and_b32 v%d, 7, v3" % vB)
A("v_lshlrev_b32 v%d, 8, v%d" % (vB, vB))
A("v_lshl_add_u32 v%d, v4, 3, v%d" % (vB, vB))
A("s_lshl_b32 s%d, s%d, 5" % (sT0, sWAVE))
A("v_add_u32 v%d, s%d, v%d" % (vAF, sT0, vB))
A("ds_read_b64 %s, v%d offset:%d" % (vr(AF, 2), vAF, HL))
A("v_add_u32 v%d, %d, v%d" % (vA, TA, vC))
NEED("D3", " lgkmcnt(0)")
tile_mfma(DR, 4, AF, ACC, TMP)
tile_store(ACC, vA, 0xffffffff, 0)
barrier()
wstamp()
A("s_lshl_b32 s%d, s%d, 12" % (sT0, sWG))
A("s_add_u32 s%d, s%d, 0x%x" % (sA0 + 10, sT0, WS_S))
A("s_add_u32 s%d, s%d, 0x%x" % (sA0 + 11, sT0, WS_D))
pub128(TA, sA0 + 11)
C("attention partials for batch = wave, head h = w>>3: poll {M,L} of the 8 splits, then gather O (lane: quad = lane&31, sp = 2t + (lane>>5))")
OG = 64; MLR = 96
A("s_lshr_b32 s%d, s%d, 3" % (sT0, sLO))
A("s_and_b32 s%d, s%d, 7" % (sT1, sLO))
A("s_lshl_b32 s%d, s%d, 2" % (sT2, sWAVE))
A("s_add_u32 s%d, s%d, s%d" % (sT2, sT2, sT0))
A("s_lshl_b32 s%d, s%d, 15" % (sT3, sT2))
A("s_lshl_b32 s%d, s%d, 9" % (sT4, sT1))
A("s_add_u32 s%d, s%d, s%d" % (sT3, sT3, sT4))
A("s_add_u32 s%d, s%d, 0x%x" % (sA0, sT3, WS_O))
for t in range(1, 4): A("s_add_u32 s%d, s%d, %d" % (sA0 + t, sA0, t * 8192))
A("s_lshl_b32 s%d, s%d, 10" % (sT3, sT2))
A("s_lshl_b32 s%d, s%d, 7" % (sT4, sT1))
A("s_add_u32 s%d, s%d, s%d" % (sT3, sT3, sT4))
A("s_add_u32 s%d, s%d, 0x%x" % (sA0 + 8, sT3, WS_ML))
A("v_and_b32 v%d, 31, v2" % t_)
A("v_lshrrev_b32 v%d, 5, v2" % u_)
A("v_lshlrev_b32 v%d, 12, v%d" % (vA, u_))
A("v_lshl_add_u32 v%d, v%d, 4, v%d" % (vA, t_, vA))
A("v_lshlrev_b32 v%d, 4, v%d" % (vB, u_))
LBL("L_pollc")
for t in range(4):
    A("buffer_load_dwordx4 %s, v%d, %s, s%d offen offset:%d sc1" % (vr(MLR + 4 * t, 4), vB, sr(rWS, 4), sA0 + 8, 32 * t))
A("s_waitcnt vmcnt(0)")
tagcheck([MLR + 2 * i + 1 for i in range(8)], s_, t_, "L_pollc_ok")
bounded_retry("L_pollc")
LBL("L_pollc_ok")
for t in range(4):
    A("buffer_load_dwordx4 %s, v%d, %s, s%d offen%s" % (vr(OG + 4 * t, 4), vA, sr(rWS, 4), sA0 + t, GSC))
C("weights while the gather flies: M over both halves")
A("v_max3_f32 v%d, v%d, v%d, v%d" % (m_, MLR, MLR + 4, MLR + 8))
A("v_max_f32 v%d, v%d, v%d" % (m_, m_, MLR + 12))
A("v_mov_b32 v%d, v%d" % (t_, m_)); A("v_mov_b32 v%d, v%d" % (u_, m_)); nop(2)
A("v_permlane32_swap_b32 v%d, v%d" % (t_, u_)); nop(1)
A("v_max_f32 v%d, v%d, v%d" % (m_, t_, u_))
WT = 112
for t in range(4):
    A("v_sub_f32 v%d, v%d, v%d" % (WT + t, MLR + 4 * t, m_))
    A("v_mul_f32 v%d, s%d, v%d" % (WT + t, sLOG2E, WT + t))
for t in range(4): A("v_exp_f32 v%d, v%d" % (WT + t, WT + t))
nop(1)
A("v_mul_f32 v%d, v%d, v%d" % (r_, WT, MLR + 2))
for t in range(1, 4): A("v_fmac_f32 v%d, v%d, v%d" % (r_, WT + t, MLR + 4 * t + 2))
A("v_mov_b32 v%d, v%d" % (t_, r_)); A("v_mov_b32 v%d, v%d" % (u_, r_)); nop(2)
A("v_permlane32_swap_b32 v%d, v%d" % (t_, u_)); nop(1)
A("v_add_f32 v%d, v%d, v%d" % (r_, t_, u_))
A("v_rcp_f32 v%d, v%d" % (r_, r_))
A("s_waitcnt vmcnt(0)")
embcheck([OG + 4 * t for t in range(4)], s_, t_, u_, "L_gc_ok")
LBL("L_gc")
for t in range(4):
    A("buffer_load_dwordx4 %s, v%d, %s, s%d offen sc1" % (vr(OG + 4 * t, 4), vA, sr(rWS, 4), sA0 + t))
A("s_waitcnt vmcnt(0)")
embcheck([OG + 4 * t for t in range(4)], s_, t_, u_, "L_gc_ok")
bounded_retry("L_gc")
LBL("L_gc_ok")
wstamp()
OA = 116
for j in range(4): A("v_mul_f32 v%d, v%d, v%d" % (OA + j, WT, OG + j))
for t in range(1, 4):
    for j in range(4): A("v_fmac_f32 v%d, v%d, v%d" % (OA + j, WT + t, OG + 4 * t + j))
xadd4(OA, OA + 4, (P32,))
for j in range(4): A("v_mul_f32 v%d, v%d, v%d" % (OA + j, OA + j, r_))
A("v_cvt_pk_bf16_f32 v%d, v%d, v%d" % (OA, OA, OA + 1))
A("v_cvt_pk_bf16_f32 v%d, v%d, v%d" % (OA + 1, OA + 2, OA + 3))
A("v_lshlrev_b32 v%d, 3, v2" % vA)
A("s_lshl_b32 s%d, s%d, 8" % (sT0, sWAVE))
A("v_add_u32 v%d, s%d, v%d" % (vA, sT0, vA))
A("s_mov_b32 exec_hi, 0")
A("ds_write_b64 v%d, %s offset:%d" % (vA, vr(OA, 2), OL))
A("s_mov_b64 exec, -1")
A("v_add_u32 v%d, %d, v%d" % (vB, TB, vC))
barrier()
wstamp()
C("phase E: wo half tile")
A("ds_read_b64 %s, v%d offset:%d" % (vr(AF, 2), vAF, OL))
A("s_waitcnt lgkmcnt(0)")
tile_mfma(WOR, 4, AF, ACC, TMP)
tile_store(ACC, vB, 0xffffffff, 0)
barrier()
pub128(TB, sA0 + 10)
wstamp()
C("final gather: wave v takes producers i' = 4v + (lane>>4); lane (quad = lane&7, sd = (lane>>3)&1)")
A("v_lshlrev_b32 v%d, 12, v4" % vA)
A("v_lshrrev_b32 v%d, 3, v3" % vB)
A("v_lshl_add_u32 v%d, v%d, 21, v%d" % (vA, vB, vA))
A("v_and_b32 v%d, 7, v3" % vB)
A("v_lshl_add_u32 v%d, v%d, 4, v%d" % (vA, vB, vA))
A("s_lshl_b32 s%d, s%d, 17" % (sT1, sHI))
A("s_lshl_b32 s%d, s%d, 7" % (sT2, sLO))
A("s_add_u32 s%d, s%d, s%d" % (sT1, sT1, sT2))
A("s_lshl_b32 s%d, s%d, 14" % (sT2, sWAVE))
A("s_add_u32 s%d, s%d, s%d" % (sT1, sT1, sT2))
A("s_add_u32 s%d, s%d, 0x%x" % (sA0, sT1, WS_S))
FG = 64
LBL("L_polld")
A("buffer_load_dwordx4 %s, v%d, %s, s%d offen sc1" % (vr(FG, 4), vA, sr(rWS, 4), sA0))
A("s_waitcnt vmcnt(0)")
embcheck([FG], s_, t_, u_, "L_polld_ok")
bounded_retry("L_polld")
LBL("L_polld_ok")
wstamp()
xadd4(FG, FG + 4, (P16, P32))
A("s_lshl_b32 s%d, s%d, 8" % (sT0, sWAVE))
A("v_add_u32 v%d, s%d, v%d" % (vA, sT0, vL16))
A("s_mov_b64 exec, 0xffff")
A("ds_write_b128 v%d, %s offset:%d" % (vA, vr(FG, 4), FS))
A("s_mov_b64 exec, -1")
barrier()
wstamp()
wdump()
A("s_cmp_lg_u32 s%d, 0" % sWAVE)
A("s_cbranch_scc1 L_done")
R0 = 64
A("v_lshlrev_b32 v%d, 2, v2" % vB)
for t in range(8): A("ds_read_b32 v%d, v%d offset:%d" % (R0 + t, vB, FS + 256 * t))
A("s_waitcnt lgkmcnt(0)")
for st in (4, 2, 1):
    for i in range(st): A("v_add_f32 v%d, v%d, v%d" % (R0 + i, R0 + i, R0 + st + i))
bf16r(R0, t_)
A("v_mul_f32 v%d, s%d, v%d" % (R0 + 1, sLOG2E, R0))
A("v_exp_f32 v%d, -v%d" % (R0 + 1, R0 + 1)); nop(1)
A("v_add_f32 v%d, 1.0, v%d" % (R0 + 1, R0 + 1))
A("v_rcp_f32 v%d, v%d" % (R0 + 1, R0 + 1)); nop(1)
A("v_mul_f32 v%d, v%d, v%d" % (R0 + 1, R0 + 1, R0))
bf16r(R0 + 1, t_)
A("v_mov_b32 v%d, v%d" % (R0 + 2, R0 + 1)); nop(2)
A("v_permlane32_swap_b32 v%d, v%d" % (R0 + 1, R0 + 2)); nop(1)
A("v_mul_f32 v%d, v%d, v%d" % (R0, R0, R0 + 2))
bf16r(R0, t_)
A("v_lshlrev_b32 v%d, 16, v%d" % (vXO, vXO))
A("v_add_f32 v%d, v%d, v%d" % (R0, R0, vXO))
A("v_cvt_pk_bf16_f32 v%d, v%d, v%d" % (R0, R0, R0))
A("v_and_b32 v%d, 31, v2" % vA)
A("v_lshlrev_b32 v%d, 1, v%d" % (vA, vA))
A("s_mov_b32 exec_hi, 0")
A("buffer_store_short v%d, v%d, %s, s%d offen" % (R0, vA, sr(rOUT, 4), sOUTOFF))
A("s_mov_b64 exec, -1")
C("workgroup 0 advances the epoch word for the next launch")
A("s_cmp_lg_u32 s%d, 0" % sWG)
A("s_cbranch_scc1 L_done")
A("v_mov_b32 v%d, s%d" % (vA, sTAG)); A("v_mov_b32 v%d, 0" % vB)
A("s_mov_b64 exec, 1")
A("buffer_store_dword v%d, v%d, %s, 0 offen sc1" % (vA, vB, sr(rWS, 4)))
LBL("L_done")
A("s_endpgm")
L.append('.section .rodata,"a"')
L.append(".p2align 6")
L.append(".amdhsa_kernel %s_kernel" % NAME)
L.append("  .amdhsa_next_free_vgpr 256")
L.append("  .amdhsa_next_free_sgpr 102")
L.append("  .amdhsa_accum_offset 256")
L.append("  .amdhsa_group_segment_fixed_size 0")
L.append("  .amdhsa_kernarg_size 96")
L.append("  .amdhsa_user_sgpr_count 2")
L.append("  .amdhsa_user_sgpr_kernarg_segment_ptr 1")
L.append("  .amdhsa_system_sgpr_workgroup_id_x 1")
L.append(".end_amdhsa_kernel")
print("\n".join(L))
sys.stderr.write("ops %d stamps %d\n" % (issued[0], nws[0]))
```

```python
import sys, os
NAME = "recurrent_scan__gqa_block_cached__glu_gated_glu__decode"
STAMP = os.environ.get("STAMP", "0") == "1"
WIN = int(os.environ.get("WIN", "6"))
EXTRA = int(os.environ.get("EXTRA", "2"))
GPOS = int(os.environ.get("GPOS", "8"))
WIN2 = int(os.environ.get("WIN2", "6"))
GSC = os.environ.get("GSC", "")
TB4 = int(os.environ.get("TB4", "4"))
QKPOS = os.environ.get("QKPOS", "V11")
SLP = int(os.environ.get("SLP", "6"))
SLP2 = int(os.environ.get("SLP2", "2"))
SKIP = int(os.environ.get("SKIP", "8"))
PRIO = os.environ.get("PRIO", "0")
NOPUB = os.environ.get("NOPUB", "0") == "1"
NOCHK = os.environ.get("NOCHK", "0") == "1"
NOGATH = os.environ.get("NOGATH", "0") == "1"
def prio(hi_half_prio, lbl):
    A("s_cmp_ge_u32 s%d, 4" % sWAVE)
    A("s_cbranch_scc1 %s_a" % lbl)
    A("s_setprio %d" % (1 - hi_half_prio))
    A("s_branch %s_b" % lbl)
    LBL("%s_a" % lbl)
    A("s_setprio %d" % hi_half_prio)
    LBL("%s_b" % lbl)
NT = " nt"
L = []
def A(s): L.append("  " + s)
def LBL(s): L.append(s + ":")
def C(s): L.append("  ; " + s)
def nop(n):
    while n > 0:
        k = min(n, 16); A("s_nop %d" % (k - 1)); n -= k
def vr(a, n=1): return "v%d" % a if n == 1 else "v[%d:%d]" % (a, a + n - 1)
def sr(a, n=1): return "s%d" % a if n == 1 else "s[%d:%d]" % (a, a + n - 1)

WS_Q = 0x100000
WS_GU = 0x200000
WS_O = 0x400000
WS_ML = 0x600000
WS_S = 0x800000
WS_D = 0xA00000
WS_SIZE = 0x1000000
XN = 0x0000; QL = 0x4000; HL = 0x4800; OL = 0x5000; MX = 0x5800; LS = 0x5900; FS = 0x6000; FL = 0x5A00
TA = 0x7000; TB = 0x10000; TC = 0x19000
LDS_SIZE = 0x22000
sWG = 2; sWAVE = 3
sSELLO = 4; sSELHI = 5; sTAG = 6; sT0 = 7; sT1 = 8; sT2 = 9; sT3 = 10; sT4 = 11; sT5 = 12; sT6 = 13; sOUTOFF = 14; sCNT = 15
P = 16
pX, pK, pV, pWQ, pWO, pBX, pWG, pWU, pWD, pOUT, pDBG, pWS = [P + 2 * i for i in range(12)]
rX, rK, rV, rWQ, rGU, rWD, rWO, rWS, rOUT, rDBG = [40 + 4 * i for i in range(10)]
sA0 = 80
sLOG2E = 96; sSCALE = 97; sMASK = 95; sLO = 98; sHI = 99

def srd(r, p, nbytes):
    A("s_mov_b32 s%d, s%d" % (r, p)); A("s_and_b32 s%d, s%d, 0xffff" % (r + 1, p + 1))
    A("s_mov_b32 s%d, 0x%x" % (r + 2, nbytes)); A("s_mov_b32 s%d, 0x20000" % (r + 3))
nws = [0]
def wstamp():
    if not STAMP: return
    A("s_memrealtime s[98:99]"); A("s_waitcnt lgkmcnt(0)")
    A("s_mov_b32 s%d, s98" % (16 + nws[0])); nws[0] += 1
def wdump():
    if not STAMP: return
    A("s_lshl_b32 s%d, s%d, 3" % (sT0, sWG)); A("s_add_u32 s%d, s%d, s%d" % (sT0, sT0, sWAVE)); A("s_lshl_b32 s%d, s%d, 7" % (sT0, sT0))
    A("s_add_u32 s%d, s%d, 0xC00000" % (sT0, sT0))
    A("s_mov_b64 exec, 1")
    for i in range(nws[0]):
        A("v_mov_b32 v8, s%d" % (16 + i)); A("v_mov_b32 v9, %d" % (i * 4))
        A("buffer_store_dword v8, v9, %s, s%d offen" % (sr(rWS, 4), sT0)); nop(2)
    A("v_mov_b32 v8, s%d" % sCNT); A("v_mov_b32 v9, 124")
    A("buffer_store_dword v8, v9, %s, s%d offen" % (sr(rWS, 4), sT0)); nop(2)
    A("s_mov_b64 exec, -1")
def bf16r_pair(a, b, t):
    A("v_cvt_pk_bf16_f32 v%d, v%d, v%d" % (t, a, b))
    A("v_lshlrev_b32 v%d, 16, v%d" % (a, t))
    A("v_and_b32 v%d, 0xffff0000, v%d" % (b, t))
def bf16r(a, t):
    A("v_cvt_pk_bf16_f32 v%d, v%d, v%d" % (t, a, a))
    A("v_lshlrev_b32 v%d, 16, v%d" % (a, t))
def xlane_hi(op, x, ta, tb):
    for sw in ("v_permlane16_swap_b32", "v_permlane32_swap_b32"):
        A("v_mov_b32 v%d, v%d" % (ta, x)); A("v_mov_b32 v%d, v%d" % (tb, x)); nop(2)
        A("%s v%d, v%d" % (sw, ta, tb)); nop(1)
        A("%s v%d, v%d, v%d" % (op, x, ta, tb))
def xadd4(x, tmp, swaps):
    for sw in swaps:
        for r in range(4): A("v_mov_b32 v%d, v%d" % (tmp + r, x + r))
        nop(2)
        for r in range(4): A("%s v%d, v%d" % (sw, x + r, tmp + r))
        nop(1)
        for r in range(4): A("v_add_f32 v%d, v%d, v%d" % (x + r, x + r, tmp + r))
P16 = "v_permlane16_swap_b32"; P32 = "v_permlane32_swap_b32"
def xlane_row(op, x, t):
    for m in ("quad_perm:[1,0,3,2]", "quad_perm:[2,3,0,1]", "row_half_mirror", "row_mirror"):
        nop(2)
        A("%s_dpp v%d, v%d, v%d %s row_mask:0xf bank_mask:0xf" % (op, t, x, x, m))
        A("v_mov_b32 v%d, v%d" % (x, t))
def tile_mfma(rows, nrows, Areg, acc, tmp, first_zero=True):
    nb = nrows // 2
    def perms(j):
        t = tmp + 4 * (j & 1); q = j >> 1; sel = sSELHI if (j & 1) else sSELLO
        for p in range(nb):
            A("v_perm_b32 v%d, v%d, v%d, s%d" % (t + p, rows + 4 * (2 * p + 1) + q, rows + 4 * (2 * p) + q, sel))
    def mf(j):
        t = tmp + 4 * (j & 1)
        c = "0" if first_zero else vr(acc + 4 * j, 4)
        if nrows == 4:
            A("v_mfma_f32_16x16x16_bf16 %s, %s, %s, %s" % (vr(acc + 4 * j, 4), vr(Areg, 2), vr(t, 2), c))
        else:
            A("v_mfma_f32_16x16x32_bf16 %s, %s, %s, %s" % (vr(acc + 4 * j, 4), vr(Areg, 4), vr(t, 4), c))
    perms(0); perms(1)
    for j in range(8):
        mf(j)
        if j + 2 < 8: perms(j + 2)
def tile_store(acc, vaddr, lo, hi):
    nop(8)
    A("s_mov_b32 exec_lo, 0x%x" % lo); A("s_mov_b32 exec_hi, 0x%x" % hi)
    for j in range(8):
        A("ds_write_b128 v%d, %s offset:%d" % (vaddr, vr(acc + 4 * j, 4), j * 32))
    A("s_mov_b64 exec, -1")
def barrier():
    A("s_waitcnt lgkmcnt(0)"); A("s_barrier")
vTB0 = 246; vTB1 = 247
def embed4(x):
    for r in range(4): A("v_and_or_b32 v%d, v%d, s%d, v%d" % (x + r, x + r, sMASK, vTB0 + (r & 1)))
def embcheck(quads, acc, t1, t2, okl):
    if NOCHK:
        A("s_branch %s" % okl); return
    first = True
    for q in quads:
        for h in (0, 2):
            A("v_xor_b32 v%d, v%d, v%d" % (t1, q + h, vTB0)); A("v_xor_b32 v%d, v%d, v%d" % (t2, q + h + 1, vTB1))
            if first: A("v_or_b32 v%d, v%d, v%d" % (acc, t1, t2)); first = False
            else: A("v_or3_b32 v%d, v%d, v%d, v%d" % (acc, acc, t1, t2))
    A("v_and_b32 v%d, 0xff, v%d" % (acc, acc))
    A("v_cmp_ne_u32 vcc, 0, v%d" % acc)
    nop(1)
    A("s_cmp_eq_u64 vcc, 0")
    A("s_cbranch_scc1 %s" % okl)
def tagcheck(tags, mn, mx, okl):
    if NOCHK:
        A("s_branch %s" % okl); return
    A("v_min3_u32 v%d, v%d, v%d, v%d" % (mn, tags[0], tags[1], tags[1]))
    A("v_max3_u32 v%d, v%d, v%d, v%d" % (mx, tags[0], tags[1], tags[1]))
    for i in range(2, len(tags), 2):
        A("v_min3_u32 v%d, v%d, v%d, v%d" % (mn, mn, tags[i], tags[i + 1]))
        A("v_max3_u32 v%d, v%d, v%d, v%d" % (mx, mx, tags[i], tags[i + 1]))
    A("v_cmp_ne_u32 vcc, s%d, v%d" % (sTAG, mn))
    A("v_cmp_ne_u32 s[%d:%d], s%d, v%d" % (sT5, sT6, sTAG, mx))
    nop(1)
    A("s_or_b64 vcc, vcc, s[%d:%d]" % (sT5, sT6))
    A("s_cmp_eq_u64 vcc, 0")
    A("s_cbranch_scc1 %s" % okl)
def bounded_retry(lbl):
    A("s_sub_u32 s%d, s%d, 1" % (sCNT, sCNT))
    A("s_cmp_lg_u32 s%d, 0" % sCNT)
    A("s_cbranch_scc1 %s" % lbl)

issued = [0]
idx = {}
def LD(text, windowed=True, name=None):
    global WIN
    if windowed and issued[0] >= WIN:
        A("s_waitcnt vmcnt(%d)" % (WIN - 1))
    A(text); issued[0] += 1
    if name: idx[name] = issued[0]
def NEED(name, extra=""):
    A("s_waitcnt vmcnt(%d)%s" % (min(63, issued[0] - idx[name]), extra))
pend = []
def pop_issue(windowed=True):
    n, t = pend.pop(0); LD(t, windowed, n)
def issue_until(name):
    while name not in idx: pop_issue()
    while pend and issued[0] - (WIN - 1) < idx[name]: pop_issue()
def topup(n):
    for _ in range(n):
        if pend: pop_issue(False)

L.append("; @launch grid=(256,1,1) block=(512,1,1) lds=%d" % LDS_SIZE)
L.append('.amdgcn_target "amdgcn-amd-amdhsa--gfx950"')
L.append(".text")
L.append(".globl %s_kernel" % NAME)
L.append(".p2align 8")
L.append(".type %s_kernel,@function" % NAME)
LBL("%s_kernel" % NAME)
A("s_cmp_ge_u32 s2, 256")
A("s_cbranch_scc1 L_done")
A("s_load_dwordx16 s[16:31], s[0:1], 0")
A("s_load_dwordx8 s[32:39], s[0:1], 64")
A("v_lshrrev_b32 v1, 6, v0")
A("v_and_b32 v2, 63, v0")
A("v_and_b32 v3, 15, v0")
A("v_readfirstlane_b32 s%d, v1" % sWAVE)
A("v_lshrrev_b32 v4, 4, v2")
A("s_mov_b32 s%d, 0x05040100" % sSELLO)
A("s_mov_b32 s%d, 0x07060302" % sSELHI)
A("s_mov_b32 s%d, 0x3fb8aa3b" % sLOG2E)
A("s_mov_b32 s%d, 0x3db504f3" % sSCALE)
A("s_mov_b32 s%d, 0xffffff00" % sMASK)
A("s_mov_b32 s%d, 400000" % sCNT)
A("s_waitcnt lgkmcnt(0)")
A("s_memrealtime s[100:101]")
A("s_mov_b32 s76, s36"); A("s_and_b32 s77, s37, 0xffff"); A("s_mov_b32 s78, 256"); A("s_mov_b32 s79, 0x20000")
A("s_load_dword s%d, s[%d:%d], 0" % (sTAG, pWS, pWS + 1))
srd(rX, pX, 16384); srd(rWQ, pWQ, 8388608)
if PRIO in ("1", "2"): prio(1, "L_pr0")

WR = 16; GR = 32; KR = 64; VR_ = 128; ACC = 192; SC = 224; QF = 240; TMP = 8
DR = 16; WOR = 32; QG = 224; HG = 48; XR = 192; XF = 200; AF = 240; vXO = 248
vA = 5; vB = 6; vC = 7; vGU = 1; vKA = 0
s_ = 8; t_ = 9; u_ = 10; m_ = 11; r_ = 12; sd_ = 13
vVA = 249; vDA = 250; vL16 = 251; vRD = 252; vST = 253; vAF = 254; vRD2 = 255
A("v_lshlrev_b32 v%d, 4, v2" % vL16)
A("s_lshl_b32 s%d, s%d, 11" % (sA0 + 14, sWAVE))
LD("buffer_load_dwordx4 %s, v%d, %s, s%d offen" % (vr(XR, 4), vL16, sr(rX, 4), sA0 + 14))
LD("buffer_load_dwordx4 %s, v%d, %s, s%d offen offset:1024" % (vr(XR + 4, 4), vL16, sr(rX, 4), sA0 + 14), name="X")
A("v_lshrrev_b32 v%d, 3, v3" % vB)
A("v_lshlrev_b32 v%d, 2, v%d" % (vB, vB))
A("v_add_u32 v%d, v%d, v4" % (vB, vB))
A("v_and_b32 v%d, 7, v3" % vC)
A("v_mul_u32_u24 v%d, 57344, v%d" % (vGU, vB))
A("v_lshl_add_u32 v%d, v%d, 4, v%d" % (vGU, vC, vGU))
A("v_lshlrev_b32 v%d, 15, v%d" % (vB, vB))
A("v_lshl_add_u32 v%d, v%d, 4, v%d" % (vB, vC, vB))
A("s_lshr_b32 s%d, s%d, 6" % (sT0, sWG))
A("s_lshl_b32 s%d, s%d, 3" % (sT0, sT0))
A("s_add_u32 s%d, s%d, s%d" % (sT0, sT0, sWAVE))
A("s_lshl_b32 s%d, s%d, 18" % (sT0, sT0))
A("s_and_b32 s%d, s%d, 63" % (sT1, sWG))
A("s_lshl_b32 s%d, s%d, 7" % (sT1, sT1))
A("s_add_u32 s%d, s%d, s%d" % (sA0, sT0, sT1))
for i in range(1, 4): A("s_add_u32 s%d, s%d, %d" % (sA0 + i, sA0, i * 8192))
for i in range(4):
    LD("buffer_load_dwordx4 %s, v%d, %s, s%d offen%s" % (vr(WR + 4 * i, 4), vB, sr(rWQ, 4), sA0 + i, NT), windowed=False, name="W%d" % i)
srd(rK, pK, 33554432); srd(rV, pV, 33554432)
A("s_and_b32 s%d, s%d, 1" % (sT0, sWG))
A("s_cmp_eq_u32 s%d, 0" % sT0)
A("s_cselect_b32 s%d, s%d, s%d" % (rGU, pWG, pWU))
A("s_cselect_b32 s%d, s%d, s%d" % (rGU + 1, pWG + 1, pWU + 1))
A("s_and_b32 s%d, s%d, 0xffff" % (rGU + 1, rGU + 1))
A("s_mov_b32 s%d, 7340032" % (rGU + 2)); A("s_mov_b32 s%d, 0x20000" % (rGU + 3))
srd(rWD, pWD, 7340032); srd(rWO, pWO, 8388608); srd(rWS, pWS, WS_SIZE); srd(rOUT, pOUT, 16384)
A("s_and_b32 s%d, s%d, 31" % (sLO, sWG))
A("s_lshr_b32 s%d, s%d, 5" % (sHI, sWG))
A("s_lshl_b32 s%d, s%d, 8" % (sT0, sHI))
A("s_lshl_b32 s%d, s%d, 3" % (sT1, sLO))
A("s_add_u32 s%d, s%d, s%d" % (sOUTOFF, sT0, sT1))
A("v_and_b32 v%d, 7, v2" % vC)
A("v_lshlrev_b32 v%d, 11, v%d" % (vC, vC))
A("v_bfe_u32 v%d, v2, 3, 2" % vA)
A("v_lshl_add_u32 v%d, v%d, 1, v%d" % (vC, vA, vC))
LD("buffer_load_ushort v%d, v%d, %s, s%d offen" % (vXO, vC, sr(rX, 4), sOUTOFF), windowed=False)
A("s_lshr_b32 s%d, s%d, 1" % (sT0, sWG))
A("s_and_b32 s%d, s%d, 1" % (sT1, sT0))
A("s_lshr_b32 s%d, s%d, 1" % (sT2, sT0))
A("s_lshl_b32 s%d, s%d, 3" % (sT1, sT1))
A("s_add_u32 s%d, s%d, s%d" % (sT1, sT1, sWAVE))
A("s_mul_i32 s%d, s%d, %d" % (sT1, sT1, 64 * 7168))
A("s_lshl_b32 s%d, s%d, 7" % (sT2, sT2))
A("s_add_u32 s%d, s%d, s%d" % (sA0 + 4, sT1, sT2))
A("s_cmp_ge_u32 s%d, 224" % sWG)
A("s_cselect_b32 s%d, 7340032, s%d" % (sA0 + 4, sA0 + 4))
for i in range(1, 8): A("s_add_u32 s%d, s%d, %d" % (sA0 + 4 + i, sA0 + 4, i * 7168))
A("v_lshrrev_b32 v%d, 2, v3" % vKA)
A("v_lshlrev_b32 v%d, 3, v%d" % (vKA, vKA))
A("v_and_b32 v%d, 3, v3" % vC)
A("v_add_u32 v%d, v%d, v%d" % (vKA, vKA, vC))
A("v_lshlrev_b32 v%d, 8, v%d" % (vKA, vKA))
A("v_lshl_add_u32 v%d, v4, 4, v%d" % (vKA, vKA))
sKB = sA0 + 12
A("s_lshl_b32 s%d, s%d, 20" % (sKB, sLO))
A("s_lshl_b32 s%d, s%d, 17" % (sT0, sHI))
A("s_add_u32 s%d, s%d, s%d" % (sKB, sKB, sT0))
A("s_lshl_b32 s%d, s%d, 14" % (sT0, sWAVE))
A("s_add_u32 s%d, s%d, s%d" % (sKB, sKB, sT0))
A("s_add_u32 s%d, s%d, 8192" % (sKB + 1, sKB))
A("v_lshlrev_b32 v%d, 11, v4" % vVA)
A("v_lshl_add_u32 v%d, v3, 4, v%d" % (vVA, vVA))
A("v_lshlrev_b32 v%d, 13, v4" % vDA)
A("v_lshl_add_u32 v%d, v3, 4, v%d" % (vDA, vDA))
pend += [("G%d" % i, "buffer_load_dwordx4 %s, v%d, %s, s%d offen%s" % (vr(GR + 4 * i, 4), vGU, sr(rGU, 4), sA0 + 4 + i, NT)) for i in range(8)]
pend += [("K%d" % (8 * u + 4 * T + d), "buffer_load_dwordx4 %s, v%d, %s, s%d offen offset:%d%s" % (vr(KR + 16 * (2 * u + T) + 4 * d, 4), vKA, sr(rK, 4), sKB + u, T * 1024 + d * 64, NT))
         for u in range(2) for T in range(2) for d in range(4)]
vl = [("V%d" % (8 * u + e), "buffer_load_dwordx4 %s, v%d, %s, s%d offen offset:%d%s" % (vr(VR_ + 32 * u + 4 * e, 4), vVA, sr(rV, 4), sKB + u, e * 256, NT))
         for u in range(2) for e in range(8)]
pend += vl[:GPOS]
issue_until("X"); topup(EXTRA)
C("layernorm of row = wave")
NEED("X")
if STAMP:
    A("s_waitcnt lgkmcnt(0)"); A("s_mov_b32 s16, s100"); nws[0] += 1
wstamp()
for q in range(8):
    A("v_lshlrev_b32 v%d, 16, v%d" % (XF + 2 * q, XR + q))
    A("v_and_b32 v%d, 0xffff0000, v%d" % (XF + 2 * q + 1, XR + q))
A("v_add_f32 v%d, v%d, v%d" % (s_, XF, XF + 1))
for i in range(2, 16): A("v_add_f32 v%d, v%d, v%d" % (s_, s_, XF + i))
xlane_row("v_add_f32", s_, t_); xlane_hi("v_add_f32", s_, t_, u_)
A("v_mul_f32 v%d, 0x3a800000, v%d" % (m_, s_))
A("v_mov_b32 v%d, 0" % s_)
for i in range(16):
    A("v_sub_f32 v%d, v%d, v%d" % (t_, XF + i, m_))
    A("v_fmac_f32 v%d, v%d, v%d" % (s_, t_, t_))
xlane_row("v_add_f32", s_, t_); xlane_hi("v_add_f32", s_, t_, u_)
A("v_mul_f32 v%d, 0x3a800000, v%d" % (s_, s_))
bf16r(m_, t_); bf16r(s_, t_)
A("v_add_f32 v%d, 0x3727c5ac, v%d" % (s_, s_)); bf16r(s_, t_)
A("v_sqrt_f32 v%d, v%d" % (sd_, s_)); nop(1); bf16r(sd_, t_)
A("v_rcp_f32 v%d, v%d" % (r_, sd_)); nop(1)
for i in range(16): A("v_sub_f32 v%d, v%d, v%d" % (XF + i, XF + i, m_))
for q in range(8): bf16r_pair(XF + 2 * q, XF + 2 * q + 1, t_)
for i in range(16):
    A("v_mul_f32 v%d, v%d, v%d" % (t_, XF + i, r_))
    A("v_fma_f32 v%d, -v%d, v%d, v%d" % (u_, t_, sd_, XF + i))
    A("v_fma_f32 v%d, v%d, v%d, v%d" % (XF + i, u_, r_, t_))
for q in range(8): A("v_cvt_pk_bf16_f32 v%d, v%d, v%d" % (XR + q, XF + 2 * q, XF + 2 * q + 1))
A("v_add_u32 v%d, s%d, v%d" % (vA, sA0 + 14, vL16))
A("ds_write_b128 v%d, %s offset:%d" % (vA, vr(XR, 4), XN))
A("ds_write_b128 v%d, %s offset:%d" % (vA, vr(XR + 4, 4), XN + 1024))
A("s_lshl_b32 s%d, s%d, 2" % (sT0, sWAVE))
A("v_mov_b32 v%d, s%d" % (vA, sT0)); A("v_mov_b32 v%d, 0" % vB)
A("ds_write_b32 v%d, v%d offset:%d" % (vA, vB, FL))
barrier()
A("s_add_u32 s%d, s%d, 0x9e3779b9" % (sTAG, sTAG))
A("s_and_b32 s%d, s%d, 0xff" % (sT0, sTAG))
A("s_bfe_u32 s%d, s%d, 0x80008" % (sT1, sTAG))
A("v_mov_b32 v%d, s%d" % (vTB0, sT0)); A("v_mov_b32 v%d, s%d" % (vTB1, sT1))
wstamp()
C("phase A: wq half tile (two k-sets in A rows 0-7 / 8-15)")
A("v_and_b32 v%d, 7, v3" % vA)
A("v_lshlrev_b32 v%d, 11, v%d" % (vA, vA))
A("v_lshrrev_b32 v%d, 3, v3" % vB)
A("v_lshlrev_b32 v%d, 2, v%d" % (vB, vB))
A("v_add_u32 v%d, v%d, v4" % (vB, vB))
A("v_lshl_add_u32 v%d, v%d, 3, v%d" % (t_, vB, vA))
A("s_lshr_b32 s%d, s%d, 6" % (sT0, sWG))
A("s_lshl_b32 s%d, s%d, 3" % (sT0, sT0))
A("s_add_u32 s%d, s%d, s%d" % (sT0, sT0, sWAVE))
A("s_lshl_b32 s%d, s%d, 6" % (sT0, sT0))
A("v_add_u32 v%d, s%d, v%d" % (t_, sT0, t_))
A("ds_read_b64 %s, v%d offset:%d" % (vr(AF, 2), t_, XN))
A("v_lshl_add_u32 v%d, v%d, 4, v%d" % (u_, vB, vA))
A("s_lshr_b32 s%d, s%d, 1" % (sT0, sWG))
A("s_and_b32 s%d, s%d, 1" % (sT0, sT0))
A("s_lshl_b32 s%d, s%d, 3" % (sT0, sT0))
A("s_add_u32 s%d, s%d, s%d" % (sT0, sT0, sWAVE))
A("s_lshl_b32 s%d, s%d, 7" % (sT0, sT0))
A("v_add_u32 v%d, s%d, v%d" % (u_, sT0, u_))
AF2 = 242
A("ds_read_b128 %s, v%d offset:%d" % (vr(AF2, 4), u_, XN))
A("v_lshrrev_b32 v%d, 1, v4" % vA)
A("s_lshl_b32 s%d, s%d, 1" % (sT0, sWAVE))
A("v_add_u32 v%d, s%d, v%d" % (vA, sT0, vA))
A("v_mul_u32_u24 v%d, 2176, v%d" % (vA, vA))
A("v_and_b32 v%d, 7, v3" % vB)
A("v_mul_u32_u24 v%d, 272, v%d" % (vB, vB))
A("v_add_u32 v%d, v%d, v%d" % (vA, vA, vB))
A("v_and_b32 v%d, 1, v4" % vB)
A("v_lshl_add_u32 v%d, v%d, 4, v%d" % (vB, vB, vA))
A("v_add_u32 v%d, %d, v%d" % (vA, TA, vB))
A("v_mul_u32_u24 v%d, 272, v3" % vC)
A("v_lshl_add_u32 v%d, v4, 4, v%d" % (vC, vC))
A("s_mul_i32 s%d, s%d, 4352" % (sT0, sWAVE))
A("v_add_u32 v%d, s%d, v%d" % (vC, sT0, vC))
A("v_and_b32 v%d, 31, v2" % t_)
A("v_lshrrev_b32 v%d, 1, v%d" % (vRD, t_))
A("v_lshlrev_b32 v%d, 4, v%d" % (vRD, vRD))
A("v_lshl_add_u32 v%d, v%d, 7, v%d" % (vRD, t_, vRD))
A("v_lshrrev_b32 v%d, 5, v2" % u_)
A("v_mul_u32_u24 v%d, %d, v%d" % (u_, 4 * 4352, u_))
A("v_add_u32 v%d, v%d, v%d" % (vRD, vRD, u_))
A("s_lshl_b32 s%d, s%d, 2" % (sT0, sWAVE))
A("v_add_u32 v%d, s%d, v%d" % (vRD, sT0, vRD))
A("v_lshrrev_b32 v%d, 1, v3" % vRD2)
A("v_lshlrev_b32 v%d, 4, v%d" % (vRD2, vRD2))
A("v_lshl_add_u32 v%d, v3, 7, v%d" % (vRD2, vRD2))
A("v_mul_u32_u24 v%d, %d, v4" % (u_, 4 * 2176))
A("v_add_u32 v%d, v%d, v%d" % (vRD2, vRD2, u_))
A("v_add_u32 v%d, s%d, v%d" % (vRD2, sT0, vRD2))
A("s_lshl_b32 s%d, s%d, 9" % (sT0, sWAVE))
A("v_lshlrev_b32 v%d, 4, v%d" % (vST, t_))
A("v_add_u32 v%d, s%d, v%d" % (vST, sT0, vST))
issue_until("W3"); topup(EXTRA)
NEED("W3", " lgkmcnt(0)")
tile_mfma(WR, 4, AF, ACC, TMP)
tile_store(ACC, vA, 0x00ff00ff, 0xff00ff00)
barrier()
wstamp()
RB = 224
def row_reduce(T, vrd, stride, swaps):
    A("v_add_u32 v%d, %d, v%d" % (vA, T, vrd))
    for t in range(4):
        for j in range(4):
            A("ds_read_b32 v%d, v%d offset:%d" % (RB + 4 * t + j, vA, t * stride + 32 * j))
    A("s_waitcnt lgkmcnt(0)")
    for j in range(4):
        A("v_add_f32 v%d, v%d, v%d" % (RB + j, RB + j, RB + 4 + j))
        A("v_add_f32 v%d, v%d, v%d" % (RB + 8 + j, RB + 8 + j, RB + 12 + j))
    for j in range(4): A("v_add_f32 v%d, v%d, v%d" % (RB + j, RB + j, RB + 8 + j))
    xadd4(RB, RB + 4, swaps)
    embed4(RB)
def pub64(T, soff):
    if NOPUB: A("s_mov_b32 s%d, 0x%x" % (soff, WS_SIZE))
    row_reduce(T, vRD2, 2176, (P16, P32))
    A("s_mov_b64 exec, 0xffff")
    LD("buffer_store_dwordx4 %s, v%d, %s, s%d offen sc1" % (vr(RB, 4), vL16, sr(rWS, 4), soff), windowed=False)
    A("s_mov_b64 exec, -1"); nop(1)
def pubcol(T, soff):
    if NOPUB: A("s_mov_b32 s%d, 0x%x" % (soff, WS_SIZE))
    A("v_add_u32 v%d, %d, v%d" % (vA, T, 242))
    for t in range(4): A("ds_read_b128 %s, v%d offset:%d" % (vr(RB + 4 * t, 4), vA, t * 4352))
    A("s_waitcnt lgkmcnt(0)")
    for j in range(4):
        A("v_add_f32 v%d, v%d, v%d" % (RB + j, RB + j, RB + 4 + j))
        A("v_add_f32 v%d, v%d, v%d" % (RB + 8 + j, RB + 8 + j, RB + 12 + j))
    for j in range(4): A("v_add_f32 v%d, v%d, v%d" % (RB + j, RB + j, RB + 8 + j))
    xadd4(RB, RB + 4, (P32,))
    embed4(RB)
    A("s_mov_b32 exec_hi, 0")
    LD("buffer_store_dwordx4 %s, v%d, %s, s%d offen sc1" % (vr(RB, 4), 243, sr(rWS, 4), soff), windowed=False)
    A("s_mov_b64 exec, -1"); nop(1)
def pub128(T, soff):
    if NOPUB: A("s_mov_b32 s%d, 0x%x" % (soff, WS_SIZE))
    row_reduce(T, vRD, 4352, (P32,))
    A("s_mov_b32 exec_hi, 0")
    LD("buffer_store_dwordx4 %s, v%d, %s, s%d offen sc1" % (vr(RB, 4), vST, sr(rWS, 4), soff), windowed=False)
    A("s_mov_b64 exec, -1"); nop(1)
C("publish q partial row b = wave")
A("s_lshr_b32 s%d, s%d, 6" % (sT0, sWG))
A("s_lshl_b32 s%d, s%d, 3" % (sT0, sT0))
A("s_add_u32 s%d, s%d, s%d" % (sT0, sT0, sWAVE))
A("s_lshl_b32 s%d, s%d, 14" % (sT0, sT0))
A("s_and_b32 s%d, s%d, 63" % (sT1, sWG))
A("s_lshl_b32 s%d, s%d, 8" % (sT1, sT1))
A("s_add_u32 s%d, s%d, s%d" % (sT0, sT0, sT1))
A("s_add_u32 s%d, s%d, 0x%x" % (sA0, sT0, WS_Q))
while "G7" not in idx: pop_issue(False)
pub64(TA, sA0)
topup(SKIP)
C("phase B: gate/up tile (two k-sets)")
A("v_add_u32 v%d, %d, v%d" % (vA, TB, vB))
NEED("G7")
tile_mfma(GR, 8, AF2, ACC, TMP)
tile_store(ACC, vA, 0x00ff00ff, 0xff00ff00)
barrier()
wstamp()
C("publish g/u partial row b = wave (workgroups >= 224 carry no unit: their store is dropped by the range check)")
A("s_and_b32 s%d, s%d, 3" % (sT0, sWG))
A("s_and_b32 s%d, s%d, 1" % (sT1, sT0))
A("s_lshr_b32 s%d, s%d, 1" % (sT2, sT0))
A("s_lshl_b32 s%d, s%d, 1" % (sT1, sT1))
A("s_add_u32 s%d, s%d, s%d" % (sT1, sT1, sT2))
A("s_lshl_b32 s%d, s%d, 3" % (sT1, sT1))
A("s_add_u32 s%d, s%d, s%d" % (sT1, sT1, sWAVE))
A("s_mul_i32 s%d, s%d, 14336" % (sT1, sT1))
A("s_lshr_b32 s%d, s%d, 2" % (sT3, sWG))
A("s_lshl_b32 s%d, s%d, 8" % (sT3, sT3))
A("s_add_u32 s%d, s%d, s%d" % (sT1, sT1, sT3))
A("s_add_u32 s%d, s%d, 0x%x" % (sA0, sT1, WS_GU))
A("s_cmp_ge_u32 s%d, 224" % sWG)
A("s_cselect_b32 s%d, 0x%x, s%d" % (sA0, WS_SIZE, sA0))
pub64(TB, sA0)
WIN = WIN2
if PRIO == "3": prio(1, "L_pr1")
C("gathers: q head = wave of (b = w>>5, hkv = (w>>3)&3), lane (quad = lane&31, ks = 2t + (lane>>5)); g/u row b = wave, lane (quad, ks = lane>>5)")
A("s_mov_b32 s%d, s%d" % (sT0, sLO))
A("s_lshl_b32 s%d, s%d, 12" % (sT1, sLO))
A("s_lshl_b32 s%d, s%d, 9" % (sT2, sWAVE))
A("s_add_u32 s%d, s%d, s%d" % (sT1, sT1, sT2))
A("s_add_u32 s%d, s%d, 0x%x" % (sA0, sT1, WS_Q))
A("s_add_u32 s%d, s%d, 0x40000" % (sA0 + 1, sA0))
A("s_mul_i32 s%d, s%d, 448" % (sT1, sT0))
A("s_mul_i32 s%d, s%d, 14336" % (sT2, sWAVE))
A("s_add_u32 s%d, s%d, s%d" % (sT1, sT1, sT2))
A("s_add_u32 s%d, s%d, 0x%x" % (sA0 + 2, sT1, WS_GU))
A("s_add_u32 s%d, s%d, %d" % (sA0 + 3, sA0 + 2, 16 * 14336))
vQA = 1; vHA = 0
if NOGATH:
    for k in range(4): A("s_mov_b32 s%d, 0x%x" % (sA0 + k, WS_SIZE))
vQA = 14; vHA = 1
A("v_and_b32 v%d, 31, v2" % t_)
A("v_lshrrev_b32 v%d, 5, v2" % u_)
A("v_lshlrev_b32 v%d, 17, v%d" % (vQA, u_))
A("v_lshl_add_u32 v%d, v%d, 4, v%d" % (vQA, t_, vQA))
A("v_min_u32 v%d, 27, v%d" % (t_, t_))
A("v_mul_u32_u24 v%d, %d, v%d" % (vHA, 8 * 14336, u_))
A("v_lshl_add_u32 v%d, v%d, 4, v%d" % (vHA, t_, vHA))
gl = [("QG%d" % t, "buffer_load_dwordx4 %s, v%d, %s, s%d offen" % (vr(QG + 4 * t, 4), vQA, sr(rWS, 4), sA0 + t)) for t in range(2)]
gl += [("HG%d" % m, "buffer_load_dwordx4 %s, v%d, %s, s%d offen" % (vr(HG + 4 * m, 4), vHA, sr(rWS, 4), sA0 + 2 + m)) for m in range(2)]
pend += [(n, t + GSC) for n, t in gl] + vl[GPOS:]
sDW = 34 if STAMP else 16
A("s_mov_b32 s%d, s%d" % (sT0, sLO))
A("s_lshl_b32 s%d, s%d, 8" % (sT1, sHI))
A("s_lshl_b32 s%d, s%d, 15" % (sT2, sWAVE))
A("s_add_u32 s%d, s%d, s%d" % (sT1, sT1, sT2))
A("s_mul_i32 s%d, s%d, %d" % (sT3, sT0, 112 * 2048))
A("s_add_u32 s%d, s%d, s%d" % (sDW, sT3, sT1))
A("s_cmp_eq_u32 s%d, 7" % sWAVE)
A("s_cselect_b32 s%d, 7340032, s%d" % (sDW, sDW))
A("s_add_u32 s%d, s%d, 4096" % (sDW + 1, sDW))
A("s_lshl_b32 s%d, s%d, 18" % (sT3, sT0))
A("s_add_u32 s%d, s%d, s%d" % (sDW + 2, sT3, sT1))
A("s_add_u32 s%d, s%d, 4096" % (sDW + 3, sDW + 2))
pend += [("D%d" % t, "buffer_load_dwordx4 %s, v%d, %s, s%d offen offset:%d%s" % (vr(DR + 4 * t, 4), vDA, sr(rWD, 4), sDW + (t >> 1), (t & 1) * 2048, NT)) for t in range(4)]
vRC = 242; vSC = 243
A("s_lshl_b32 s%d, s%d, 4" % (sT0, sWAVE))
A("v_add_u32 v%d, s%d, v3" % (t_, sT0))
A("v_and_b32 v%d, 1, v4" % u_)
A("v_lshlrev_b32 v%d, 4, v%d" % (u_, u_))
A("v_lshl_add_u32 v%d, v%d, 5, v%d" % (vSC, t_, u_))
A("v_lshrrev_b32 v%d, 3, v%d" % (t_, t_))
A("v_lshl_add_u32 v%d, v%d, 4, v%d" % (vRC, t_, vSC))
A("v_lshrrev_b32 v%d, 1, v4" % t_)
A("v_mul_u32_u24 v%d, %d, v%d" % (t_, 4 * 4352, t_))
A("v_add_u32 v%d, v%d, v%d" % (vRC, vRC, t_))
pend += [("O%d" % t, "buffer_load_dwordx4 %s, v%d, %s, s%d offen offset:%d%s" % (vr(WOR + 4 * t, 4), vDA, sr(rWO, 4), sDW + 2 + (t >> 1), (t & 1) * 2048, NT)) for t in range(4)]
topup(SKIP)
issue_until("HG1"); topup(EXTRA)
NEED("QG1")
wstamp()
embcheck([QG, QG + 4], s_, t_, u_, "L_g_ok")
LBL("L_g_retry")
for n, t in gl[:2]: A(t + " sc1")
A("s_waitcnt vmcnt(0)")
embcheck([QG, QG + 4], s_, t_, u_, "L_g_ok")
bounded_retry("L_g_retry")
LBL("L_g_ok")
wstamp()
C("q -> QL[head = wave][quad]")
XT = 192
for j in range(4): A("v_add_f32 v%d, v%d, v%d" % (QG + j, QG + j, QG + 4 + j))
xadd4(QG, XT, (P32,))
A("v_cvt_pk_bf16_f32 v%d, v%d, v%d" % (QG, QG, QG + 1))
A("v_cvt_pk_bf16_f32 v%d, v%d, v%d" % (QG + 1, QG + 2, QG + 3))
A("v_lshlrev_b32 v%d, 3, v2" % vA)
A("s_lshl_b32 s%d, s%d, 8" % (sT0, sWAVE))
A("v_add_u32 v%d, s%d, v%d" % (vA, sT0, vA))
A("s_mov_b32 exec_hi, 0")
A("ds_write_b64 v%d, %s offset:%d" % (vA, vr(QG, 2), QL))
A("s_mov_b64 exec, -1")
A("s_lshl_b32 s%d, s%d, 2" % (sT0, sWAVE))
A("v_mov_b32 v%d, s%d" % (vA, sT0)); A("v_mov_b32 v%d, 1" % vB)
A("ds_write_b32 v%d, v%d offset:%d" % (vA, vB, FL))
C("h = bf16(bf16(sigmoid(g)) * u) -> HL[b = wave][quad] (quads >= 28 zero)")
NEED("HG1")
embcheck([HG, HG + 4], s_, t_, u_, "L_h_ok")
LBL("L_h_retry")
for n, t in gl[2:]: A(t + " sc1")
A("s_waitcnt vmcnt(0)")
embcheck([HG, HG + 4], s_, t_, u_, "L_h_ok")
bounded_retry("L_h_retry")
LBL("L_h_ok")
xadd4(HG, 56, (P32,)); xadd4(HG + 4, 56, (P32,))
for q in range(4): bf16r_pair(HG + 2 * q, HG + 2 * q + 1, t_)
for j in range(4): A("v_mul_f32 v%d, s%d, v%d" % (HG + j, sLOG2E, HG + j))
for j in range(4): A("v_exp_f32 v%d, -v%d" % (HG + j, HG + j))
nop(1)
for j in range(4): A("v_add_f32 v%d, 1.0, v%d" % (HG + j, HG + j))
for j in range(4): A("v_rcp_f32 v%d, v%d" % (HG + j, HG + j))
nop(1)
bf16r_pair(HG, HG + 1, t_); bf16r_pair(HG + 2, HG + 3, t_)
for j in range(4): A("v_mul_f32 v%d, v%d, v%d" % (HG + j, HG + j, HG + 4 + j))
A("v_cmp_gt_u32 vcc, 28, v2")
A("v_cvt_pk_bf16_f32 v%d, v%d, v%d" % (HG, HG, HG + 1))
A("v_cvt_pk_bf16_f32 v%d, v%d, v%d" % (HG + 1, HG + 2, HG + 3))
A("v_lshlrev_b32 v%d, 3, v2" % vA)
A("s_lshl_b32 s%d, s%d, 8" % (sT0, sWAVE))
A("v_add_u32 v%d, s%d, v%d" % (vA, sT0, vA))
A("v_cndmask_b32 v%d, 0, v%d, vcc" % (HG, HG))
A("v_cndmask_b32 v%d, 0, v%d, vcc" % (HG + 1, HG + 1))
A("s_mov_b32 exec_hi, 0")
A("ds_write_b64 v%d, %s offset:%d" % (vA, vr(HG, 2), HL))
A("s_mov_b64 exec, -1")
while QKPOS not in idx: pop_issue()
topup(TB4)
C("wait until all eight q heads are in LDS (flags), no workgroup barrier in the stream")
A("v_mov_b32 v%d, 0" % vA)
LBL("L_qf")
A("ds_read_b128 %s, v%d offset:%d" % (vr(192, 4), vA, FL))
A("ds_read_b128 %s, v%d offset:%d" % (vr(196, 4), vA, FL + 16))
A("s_waitcnt lgkmcnt(0)")
A("v_and_b32 v%d, v192, v193" % s_)
for i in range(194, 200): A("v_and_b32 v%d, v%d, v%d" % (s_, s_, i))
A("v_cmp_ne_u32 vcc, 1, v%d" % s_)
nop(1)
A("s_cmp_eq_u64 vcc, 0")
A("s_cbranch_scc1 L_qf_ok")
bounded_retry("L_qf")
LBL("L_qf_ok")
wstamp()
if PRIO in ("2", "3"): A("s_setprio 0")
C("QK^T")
A("v_and_b32 v%d, 7, v3" % vA)
A("v_lshlrev_b32 v%d, 8, v%d" % (vA, vA))
A("v_lshl_add_u32 v%d, v4, 4, v%d" % (vA, vA))
QF4 = 192
for d in range(4): A("ds_read_b128 %s, v%d offset:%d" % (vr(QF4 + 4 * d, 4), vA, QL + 64 * d))
for d in range(4):
    A("s_waitcnt lgkmcnt(%d)" % (3 - d))
    for t in range(4):
        c = "0" if d == 0 else vr(SC + 4 * t, 4)
        A("v_mfma_f32_16x16x32_bf16 %s, %s, %s, %s" % (vr(SC + 4 * t, 4), vr(KR + 16 * t + 4 * d, 4), vr(QF4 + 4 * d, 4), c))
topup(EXTRA)
nop(8)
C("scores: bf16 round, scale, bf16 round; max")
for q in range(8): bf16r_pair(SC + 2 * q, SC + 2 * q + 1, t_)
for i in range(16): A("v_mul_f32 v%d, s%d, v%d" % (SC + i, sSCALE, SC + i))
for q in range(8): bf16r_pair(SC + 2 * q, SC + 2 * q + 1, t_)
A("v_max3_f32 v%d, v%d, v%d, v%d" % (m_, SC, SC + 1, SC + 2))
for i in range(3, 15, 2): A("v_max3_f32 v%d, v%d, v%d, v%d" % (m_, m_, SC + i, SC + i + 1))
A("v_max_f32 v%d, v%d, v%d" % (m_, m_, SC + 15))
xlane_hi("v_max_f32", m_, t_, u_)
A("v_lshlrev_b32 v%d, 5, v3" % vA)
A("s_lshl_b32 s%d, s%d, 2" % (sT0, sWAVE))
A("v_add_u32 v%d, s%d, v%d" % (vA, sT0, vA))
A("s_mov_b64 exec, 0xff")
A("ds_write_b32 v%d, v%d offset:%d" % (vA, m_, MX))
A("s_mov_b64 exec, -1")
wstamp()
PF = 64
A("v_mul_f32 v%d, s%d, v%d" % (m_, sLOG2E, m_))
for i in range(16): A("v_fma_f32 v%d, v%d, s%d, -v%d" % (SC + i, SC + i, sLOG2E, m_))
for i in range(16): A("v_exp_f32 v%d, v%d" % (SC + i, SC + i))
nop(1)
A("v_add_f32 v%d, v%d, v%d" % (s_, SC, SC + 1))
for i in range(2, 16): A("v_add_f32 v%d, v%d, v%d" % (s_, s_, SC + i))
for q in range(8): A("v_cvt_pk_bf16_f32 v%d, v%d, v%d" % (PF + q, SC + 2 * q, SC + 2 * q + 1))
xlane_hi("v_add_f32", s_, t_, u_)
A("s_mov_b64 exec, 0xff")
A("ds_write_b32 v%d, v%d offset:%d" % (vA, s_, LS))
A("s_mov_b64 exec, -1")
C("PV, first 32 keys")
topup(EXTRA)
NEED("V7")
tile_mfma(VR_, 8, PF, ACC, TMP, True)
A("v_and_b32 v%d, 7, v3" % vB)
A("v_lshlrev_b32 v%d, 8, v%d" % (vB, vB))
A("v_lshl_add_u32 v%d, v4, 3, v%d" % (vB, vB))
A("s_lshl_b32 s%d, s%d, 5" % (sT0, sWAVE))
A("v_add_u32 v%d, s%d, v%d" % (vAF, sT0, vB))
C("PV, last 32 keys")
issue_until("V15")
while pend: pop_issue(False)
NEED("V15")
wstamp()
tile_mfma(VR_ + 32, 8, PF + 4, ACC, TMP, False)
A("v_add_u32 v%d, %d, v%d" % (vA, TC, vC))
tile_store(ACC, vA, 0xffffffff, 0)
barrier()
wstamp()
C("publish attention partial row head = wave, and {M,L} of that head")
MB = 72
A("s_lshl_b32 s%d, s%d, 15" % (sT0, sLO))
A("s_lshl_b32 s%d, s%d, 12" % (sT1, sHI))
A("s_add_u32 s%d, s%d, s%d" % (sT0, sT0, sT1))
A("s_add_u32 s%d, s%d, 0x%x" % (sA0 + 4, sT0, WS_O))
A("s_lshl_b32 s%d, s%d, 5" % (sT0, sWAVE))
A("v_mov_b32 v%d, s%d" % (vB, sT0))
A("ds_read_b128 %s, v%d offset:%d" % (vr(MB, 4), vB, LS))
A("ds_read_b128 %s, v%d offset:%d" % (vr(MB + 4, 4), vB, LS + 16))
A("ds_read_b128 %s, v%d offset:%d" % (vr(MB + 8, 4), vB, MX))
A("ds_read_b128 %s, v%d offset:%d" % (vr(MB + 12, 4), vB, MX + 16))
A("v_add_u32 v%d, %d, v%d" % (vA, TC, vRD))
for t in range(4):
    for j in range(4):
        A("ds_read_b32 v%d, v%d offset:%d" % (RB + 4 * t + j, vA, t * 4352 + 32 * j))
A("s_waitcnt lgkmcnt(15)")
A("s_waitcnt lgkmcnt(0)") if False else None
C("merge weights w_v = exp(m_v - M) of the eight waves")
A("v_max3_f32 v%d, v%d, v%d, v%d" % (MB + 16, MB + 8, MB + 9, MB + 10))
A("v_max3_f32 v%d, v%d, v%d, v%d" % (MB + 16, MB + 16, MB + 11, MB + 12))
A("v_max3_f32 v%d, v%d, v%d, v%d" % (MB + 16, MB + 16, MB + 13, MB + 14))
A("v_max_f32 v%d, v%d, v%d" % (MB + 16, MB + 16, MB + 15))
for i in range(8):
    A("v_sub_f32 v%d, v%d, v%d" % (MB + 8 + i, MB + 8 + i, MB + 16))
    A("v_mul_f32 v%d, s%d, v%d" % (MB + 8 + i, sLOG2E, MB + 8 + i))
for i in range(8): A("v_exp_f32 v%d, v%d" % (MB + 8 + i, MB + 8 + i))
A("s_mov_b32 s%d, 0" % sT5); A("s_mov_b32 s%d, -1" % sT6)
A("v_mul_f32 v%d, v%d, v%d" % (MB + 18, MB, MB + 8))
for i in range(1, 8): A("v_fmac_f32 v%d, v%d, v%d" % (MB + 18, MB + i, MB + 8 + i))
for t in range(4): A("v_cndmask_b32 v%d, v%d, v%d, s[%d:%d]" % (MB + t, MB + 8 + t, MB + 12 + t, sT5, sT6))
A("s_waitcnt lgkmcnt(0)")
for j in range(4): A("v_mul_f32 v%d, v%d, v%d" % (RB + j, RB + j, MB))
for t in range(1, 4):
    for j in range(4): A("v_fmac_f32 v%d, v%d, v%d" % (RB + j, RB + 4 * t + j, MB + t))
xadd4(RB, RB + 4, (P32,))
embed4(RB)
A("s_mov_b32 exec_hi, 0")
LD("buffer_store_dwordx4 %s, v%d, %s, s%d offen sc1" % (vr(RB, 4), vST, sr(rWS, 4), sA0 + 4), windowed=False)
A("s_mov_b64 exec, -1")
A("v_mov_b32 v%d, s%d" % (MB + 17, sTAG)); A("v_mov_b32 v%d, s%d" % (MB + 19, sTAG))
A("s_lshl_b32 s%d, s%d, 10" % (sT0, sLO))
A("s_lshl_b32 s%d, s%d, 4" % (sT1, sHI))
A("s_add_u32 s%d, s%d, s%d" % (sT0, sT0, sT1))
A("s_lshl_b32 s%d, s%d, 7" % (sT1, sWAVE))
A("s_add_u32 s%d, s%d, s%d" % (sT0, sT0, sT1))
A("s_add_u32 s%d, s%d, 0x%x" % (sA0 + 5, sT0, WS_ML))
A("v_mov_b32 v%d, 0" % vB)
A("s_mov_b64 exec, 1")
LD("buffer_store_dwordx4 %s, v%d, %s, s%d offen sc1" % (vr(MB + 16, 4), vB, sr(rWS, 4), sA0 + 5), windowed=False)
A("s_mov_b64 exec, -1")
wstamp()
vGA = 244; vGB = 245
C("attention partials for batch = wave, head h = w>>3: poll {M,L} of the 8 splits, then gather O (lane: quad = lane&31, sp = 2t + (lane>>5))")
OG = 64; MLR = 96
A("s_lshr_b32 s%d, s%d, 3" % (sT0, sLO))
A("s_and_b32 s%d, s%d, 7" % (sT1, sLO))
A("s_lshl_b32 s%d, s%d, 2" % (sT2, sWAVE))
A("s_add_u32 s%d, s%d, s%d" % (sT2, sT2, sT0))
A("s_lshl_b32 s%d, s%d, 15" % (sT3, sT2))
A("s_lshl_b32 s%d, s%d, 9" % (sT4, sT1))
A("s_add_u32 s%d, s%d, s%d" % (sT3, sT3, sT4))
A("s_add_u32 s%d, s%d, 0x%x" % (sA0, sT3, WS_O))
for t in range(1, 4): A("s_add_u32 s%d, s%d, %d" % (sA0 + t, sA0, t * 8192))
A("s_lshl_b32 s%d, s%d, 10" % (sT3, sT2))
A("s_lshl_b32 s%d, s%d, 7" % (sT4, sT1))
A("s_add_u32 s%d, s%d, s%d" % (sT3, sT3, sT4))
A("s_add_u32 s%d, s%d, 0x%x" % (sA0 + 8, sT3, WS_ML))
A("v_and_b32 v%d, 31, v2" % t_)
A("v_lshrrev_b32 v%d, 5, v2" % u_)
A("v_lshlrev_b32 v%d, 12, v%d" % (vGA, u_))
A("v_lshl_add_u32 v%d, v%d, 4, v%d" % (vGA, t_, vGA))
A("v_lshlrev_b32 v%d, 4, v%d" % (vGB, u_))
for t in range(4):
    LD("buffer_load_dwordx4 %s, v%d, %s, s%d offen offset:%d sc1" % (vr(MLR + 4 * t, 4), vGB, sr(rWS, 4), sA0 + 8, 32 * t), windowed=False)
for t in range(4):
    LD("buffer_load_dwordx4 %s, v%d, %s, s%d offen%s" % (vr(OG + 4 * t, 4), vGA, sr(rWS, 4), sA0 + t, GSC), windowed=False)
C("phase D: down half tile")
DACC = 192
A("ds_read_b64 %s, v%d offset:%d" % (vr(AF, 2), vAF, HL))
A("v_add_u32 v%d, %d, v%d" % (vA, TA, vC))
NEED("D3", " lgkmcnt(0)")
tile_mfma(DR, 4, AF, DACC, TMP)
tile_store(DACC, vA, 0xffffffff, 0)
barrier()
C("publish d partial (column-major), then pre-transpose the wo fragments")
A("s_lshl_b32 s%d, s%d, 12" % (sT0, sWG))
A("s_add_u32 s%d, s%d, 0x%x" % (sA0 + 10, sT0, WS_S))
A("s_add_u32 s%d, s%d, 0x%x" % (sA0 + 11, sT0, WS_D))
pubcol(TA, sA0 + 11)
EF = 128
NEED("O3")
for j in range(8):
    q = j >> 1; sel = sSELHI if (j & 1) else sSELLO
    for p in range(2):
        A("v_perm_b32 v%d, v%d, v%d, s%d" % (EF + 2 * j + p, WOR + 4 * (2 * p + 1) + q, WOR + 4 * (2 * p) + q, sel))
A("s_waitcnt vmcnt(0)")
tagcheck([MLR + 2 * i + 1 for i in range(8)], s_, t_, "L_pc1")
A("s_branch L_pollc")
LBL("L_pc1")
embcheck([OG + 4 * t for t in range(4)], s_, t_, u_, "L_gc_ok")
LBL("L_pollc")
A("s_sleep %d" % SLP)
for t in range(4):
    A("buffer_load_dwordx4 %s, v%d, %s, s%d offen offset:%d sc1" % (vr(MLR + 4 * t, 4), vGB, sr(rWS, 4), sA0 + 8, 32 * t))
A("s_waitcnt vmcnt(0)")
tagcheck([MLR + 2 * i + 1 for i in range(8)], s_, t_, "L_pc2")
bounded_retry("L_pollc")
A("s_branch L_gc_ok")
LBL("L_pc2")
for t in range(4):
    A("buffer_load_dwordx4 %s, v%d, %s, s%d offen sc1" % (vr(OG + 4 * t, 4), vGA, sr(rWS, 4), sA0 + t))
A("s_waitcnt vmcnt(0)")
embcheck([OG + 4 * t for t in range(4)], s_, t_, u_, "L_gc_ok")
bounded_retry("L_pc2")
LBL("L_gc_ok")
wstamp()
C("weights while the gather flies: M over both halves")
A("v_max3_f32 v%d, v%d, v%d, v%d" % (m_, MLR, MLR + 4, MLR + 8))
A("v_max_f32 v%d, v%d, v%d" % (m_, m_, MLR + 12))
A("v_mov_b32 v%d, v%d" % (t_, m_)); A("v_mov_b32 v%d, v%d" % (u_, m_)); nop(2)
A("v_permlane32_swap_b32 v%d, v%d" % (t_, u_)); nop(1)
A("v_max_f32 v%d, v%d, v%d" % (m_, t_, u_))
WT = 112
for t in range(4):
    A("v_sub_f32 v%d, v%d, v%d" % (WT + t, MLR + 4 * t, m_))
    A("v_mul_f32 v%d, s%d, v%d" % (WT + t, sLOG2E, WT + t))
for t in range(4): A("v_exp_f32 v%d, v%d" % (WT + t, WT + t))
nop(1)
A("v_mul_f32 v%d, v%d, v%d" % (r_, WT, MLR + 2))
for t in range(1, 4): A("v_fmac_f32 v%d, v%d, v%d" % (r_, WT + t, MLR + 4 * t + 2))
A("v_mov_b32 v%d, v%d" % (t_, r_)); A("v_mov_b32 v%d, v%d" % (u_, r_)); nop(2)
A("v_permlane32_swap_b32 v%d, v%d" % (t_, u_)); nop(1)
A("v_add_f32 v%d, v%d, v%d" % (r_, t_, u_))
A("v_rcp_f32 v%d, v%d" % (r_, r_))
nop(1)
OA = 116
for j in range(4): A("v_mul_f32 v%d, v%d, v%d" % (OA + j, WT, OG + j))
for t in range(1, 4):
    for j in range(4): A("v_fmac_f32 v%d, v%d, v%d" % (OA + j, WT + t, OG + 4 * t + j))
xadd4(OA, OA + 4, (P32,))
for j in range(4): A("v_mul_f32 v%d, v%d, v%d" % (OA + j, OA + j, r_))
A("v_cvt_pk_bf16_f32 v%d, v%d, v%d" % (OA, OA, OA + 1))
A("v_cvt_pk_bf16_f32 v%d, v%d, v%d" % (OA + 1, OA + 2, OA + 3))
A("v_lshlrev_b32 v%d, 3, v2" % vA)
A("s_lshl_b32 s%d, s%d, 8" % (sT0, sWAVE))
A("v_add_u32 v%d, s%d, v%d" % (vA, sT0, vA))
A("s_mov_b32 exec_hi, 0")
A("ds_write_b64 v%d, %s offset:%d" % (vA, vr(OA, 2), OL))
A("s_mov_b64 exec, -1")
A("v_add_u32 v%d, %d, v%d" % (vB, TB, vC))
barrier()
wstamp()
C("phase E: wo half tile")
A("ds_read_b64 %s, v%d offset:%d" % (vr(AF, 2), vAF, OL))
A("s_waitcnt lgkmcnt(0)")
for j in range(8):
    A("v_mfma_f32_16x16x16_bf16 %s, %s, %s, 0" % (vr(ACC + 4 * j, 4), vr(AF, 2), vr(EF + 2 * j, 2)))
tile_store(ACC, vB, 0xffffffff, 0)
barrier()
pubcol(TB, sA0 + 10)
wstamp()
C("final gather: wave v takes producers i' = 4v + (lane>>4); lane (quad = lane&7, sd = (lane>>3)&1)")
A("v_lshlrev_b32 v%d, 12, v4" % vA)
A("v_lshrrev_b32 v%d, 3, v3" % vB)
A("v_lshl_add_u32 v%d, v%d, 21, v%d" % (vA, vB, vA))
A("v_and_b32 v%d, 7, v3" % vB)
A("v_lshl_add_u32 v%d, v%d, 4, v%d" % (vA, vB, vA))
A("s_lshl_b32 s%d, s%d, 17" % (sT1, sHI))
A("s_lshl_b32 s%d, s%d, 7" % (sT2, sLO))
A("s_add_u32 s%d, s%d, s%d" % (sT1, sT1, sT2))
A("s_lshl_b32 s%d, s%d, 14" % (sT2, sWAVE))
A("s_add_u32 s%d, s%d, s%d" % (sT1, sT1, sT2))
A("s_add_u32 s%d, s%d, 0x%x" % (sA0, sT1, WS_S))
FG = 64
LBL("L_polld")
A("buffer_load_dwordx4 %s, v%d, %s, s%d offen sc1" % (vr(FG, 4), vA, sr(rWS, 4), sA0))
A("s_waitcnt vmcnt(0)")
embcheck([FG], s_, t_, u_, "L_polld_ok")
A("s_sleep %d" % SLP2)
bounded_retry("L_polld")
LBL("L_polld_ok")
wstamp()
xadd4(FG, FG + 4, (P16, P32))
A("s_lshl_b32 s%d, s%d, 8" % (sT0, sWAVE))
A("v_add_u32 v%d, s%d, v%d" % (vA, sT0, vL16))
A("s_mov_b64 exec, 0xffff")
A("ds_write_b128 v%d, %s offset:%d" % (vA, vr(FG, 4), FS))
A("s_mov_b64 exec, -1")
barrier()
wstamp()
wdump()
A("s_cmp_lg_u32 s%d, 0" % sWAVE)
A("s_cbranch_scc1 L_done")
R0 = 64
A("v_lshlrev_b32 v%d, 2, v2" % vB)
for t in range(8): A("ds_read_b32 v%d, v%d offset:%d" % (R0 + t, vB, FS + 256 * t))
A("s_waitcnt lgkmcnt(0)")
for st in (4, 2, 1):
    for i in range(st): A("v_add_f32 v%d, v%d, v%d" % (R0 + i, R0 + i, R0 + st + i))
bf16r(R0, t_)
A("v_mul_f32 v%d, s%d, v%d" % (R0 + 1, sLOG2E, R0))
A("v_exp_f32 v%d, -v%d" % (R0 + 1, R0 + 1)); nop(1)
A("v_add_f32 v%d, 1.0, v%d" % (R0 + 1, R0 + 1))
A("v_rcp_f32 v%d, v%d" % (R0 + 1, R0 + 1)); nop(1)
A("v_mul_f32 v%d, v%d, v%d" % (R0 + 1, R0 + 1, R0))
bf16r(R0 + 1, t_)
A("v_mov_b32 v%d, v%d" % (R0 + 2, R0 + 1)); nop(2)
A("v_permlane32_swap_b32 v%d, v%d" % (R0 + 1, R0 + 2)); nop(1)
A("v_mul_f32 v%d, v%d, v%d" % (R0, R0, R0 + 2))
bf16r(R0, t_)
A("v_lshlrev_b32 v%d, 16, v%d" % (vXO, vXO))
A("v_add_f32 v%d, v%d, v%d" % (R0, R0, vXO))
A("v_cvt_pk_bf16_f32 v%d, v%d, v%d" % (R0, R0, R0))
A("v_and_b32 v%d, 7, v2" % vA)
A("v_lshlrev_b32 v%d, 11, v%d" % (vA, vA))
A("v_bfe_u32 v%d, v2, 3, 2" % vB)
A("v_lshl_add_u32 v%d, v%d, 1, v%d" % (vA, vB, vA))
A("s_mov_b32 exec_hi, 0")
A("buffer_store_short v%d, v%d, %s, s%d offen" % (R0, vA, sr(rOUT, 4), sOUTOFF))
A("s_mov_b64 exec, -1")
A("s_memrealtime s[16:17]")
A("s_waitcnt lgkmcnt(0)")
A("s_not_b32 s18, s100")
A("v_mov_b32 v8, s16"); A("v_mov_b32 v9, s18"); A("v_mov_b32 v10, 0"); A("v_mov_b32 v11, 4")
A("s_mov_b64 exec, 1")
A("buffer_atomic_umax v8, v10, s[76:79], 0 offen")
A("buffer_atomic_umax v9, v11, s[76:79], 0 offen")
A("s_mov_b64 exec, -1")
C("workgroup 0 advances the epoch word for the next launch")
A("s_cmp_lg_u32 s%d, 0" % sWG)
A("s_cbranch_scc1 L_done")
A("v_mov_b32 v%d, s%d" % (vA, sTAG)); A("v_mov_b32 v%d, 0" % vB)
A("s_mov_b64 exec, 1")
A("buffer_store_dword v%d, v%d, %s, 0 offen sc1" % (vA, vB, sr(rWS, 4)))
LBL("L_done")
A("s_endpgm")
L.append('.section .rodata,"a"')
L.append(".p2align 6")
L.append(".amdhsa_kernel %s_kernel" % NAME)
L.append("  .amdhsa_next_free_vgpr 256")
L.append("  .amdhsa_next_free_sgpr 102")
L.append("  .amdhsa_accum_offset 256")
L.append("  .amdhsa_group_segment_fixed_size 0")
L.append("  .amdhsa_kernarg_size 96")
L.append("  .amdhsa_user_sgpr_count 2")
L.append("  .amdhsa_user_sgpr_kernarg_segment_ptr 1")
L.append("  .amdhsa_system_sgpr_workgroup_id_x 1")
L.append(".end_amdhsa_kernel")
print("\n".join(L))
sys.stderr.write("ops %d stamps %d\n" % (issued[0], nws[0]))
```

```python
import sys, os
NAME = "recurrent_scan__gqa_block_cached__glu_gated_glu__decode"
STAMP = os.environ.get("STAMP", "0") == "1"
WIN = int(os.environ.get("WIN", "6"))
EXTRA = int(os.environ.get("EXTRA", "2"))
GPOS = int(os.environ.get("GPOS", "8"))
WIN2 = int(os.environ.get("WIN2", "6"))
GSC = os.environ.get("GSC", "")
TB4 = int(os.environ.get("TB4", "4"))
QKPOS = os.environ.get("QKPOS", "V11")
SLP = int(os.environ.get("SLP", "6"))
SLP2 = int(os.environ.get("SLP2", "2"))
SKIP = int(os.environ.get("SKIP", "8"))
PRIO = os.environ.get("PRIO", "0")
NOPUB = os.environ.get("NOPUB", "0") == "1"
NOCHK = os.environ.get("NOCHK", "0") == "1"
NOGATH = os.environ.get("NOGATH", "0") == "1"
def prio(hi_half_prio, lbl):
    A("s_cmp_ge_u32 s%d, 4" % sWAVE)
    A("s_cbranch_scc1 %s_a" % lbl)
    A("s_setprio %d" % (1 - hi_half_prio))
    A("s_branch %s_b" % lbl)
    LBL("%s_a" % lbl)
    A("s_setprio %d" % hi_half_prio)
    LBL("%s_b" % lbl)
NT = " nt"
L = []
def A(s): L.append("  " + s)
def LBL(s): L.append(s + ":")
def C(s): L.append("  ; " + s)
def nop(n):
    while n > 0:
        k = min(n, 16); A("s_nop %d" % (k - 1)); n -= k
def vr(a, n=1): return "v%d" % a if n == 1 else "v[%d:%d]" % (a, a + n - 1)
def sr(a, n=1): return "s%d" % a if n == 1 else "s[%d:%d]" % (a, a + n - 1)

WS_Q = 0x100000
WS_GU = 0x200000
WS_O = 0x400000
WS_ML = 0x600000
WS_S = 0x800000
WS_D = 0xA00000
WS_SIZE = 0x1000000
XN = 0x0000; QL = 0x4000; HL = 0x4800; OL = 0x5000; MX = 0x5800; LS = 0x5900; FS = 0x6000; FL = 0x5A00
TA = 0x7000; TB = 0x10000; TC = 0x19000
LDS_SIZE = 0x22000
sWG = 2; sWAVE = 3
sSELLO = 4; sSELHI = 5; sTAG = 6; sT0 = 7; sT1 = 8; sT2 = 9; sT3 = 10; sT4 = 11; sT5 = 12; sT6 = 13; sOUTOFF = 14; sCNT = 15
P = 16
pX, pK, pV, pWQ, pWO, pBX, pWG, pWU, pWD, pOUT, pDBG, pWS = [P + 2 * i for i in range(12)]
rX, rK, rV, rWQ, rGU, rWD, rWO, rWS, rOUT, rDBG = [40 + 4 * i for i in range(10)]
sA0 = 80
sLOG2E = 96; sSCALE = 97; sMASK = 95; sLO = 76; sHI = 77

def srd(r, p, nbytes):
    A("s_mov_b32 s%d, s%d" % (r, p)); A("s_and_b32 s%d, s%d, 0xffff" % (r + 1, p + 1))
    A("s_mov_b32 s%d, 0x%x" % (r + 2, nbytes)); A("s_mov_b32 s%d, 0x20000" % (r + 3))
nws = [0]
def wstamp():
    if not STAMP: return
    A("s_memrealtime s[98:99]"); A("s_waitcnt lgkmcnt(0)")
    A("s_mov_b32 s%d, s98" % (16 + nws[0])); nws[0] += 1
def wdump():
    if not STAMP: return
    A("s_lshl_b32 s%d, s%d, 3" % (sT0, sWG)); A("s_add_u32 s%d, s%d, s%d" % (sT0, sT0, sWAVE)); A("s_lshl_b32 s%d, s%d, 7" % (sT0, sT0))
    A("s_add_u32 s%d, s%d, 0xC00000" % (sT0, sT0))
    A("s_mov_b64 exec, 1")
    for i in range(nws[0]):
        A("v_mov_b32 v8, s%d" % (16 + i)); A("v_mov_b32 v9, %d" % (i * 4))
        A("buffer_store_dword v8, v9, %s, s%d offen" % (sr(rWS, 4), sT0)); nop(2)
    A("v_mov_b32 v8, s%d" % sCNT); A("v_mov_b32 v9, 124")
    A("buffer_store_dword v8, v9, %s, s%d offen" % (sr(rWS, 4), sT0)); nop(2)
    A("s_mov_b64 exec, -1")
def bf16r_pair(a, b, t):
    A("v_cvt_pk_bf16_f32 v%d, v%d, v%d" % (t, a, b))
    A("v_lshlrev_b32 v%d, 16, v%d" % (a, t))
    A("v_and_b32 v%d, 0xffff0000, v%d" % (b, t))
def bf16r(a, t):
    A("v_cvt_pk_bf16_f32 v%d, v%d, v%d" % (t, a, a))
    A("v_lshlrev_b32 v%d, 16, v%d" % (a, t))
def xlane_hi(op, x, ta, tb):
    for sw in ("v_permlane16_swap_b32", "v_permlane32_swap_b32"):
        A("v_mov_b32 v%d, v%d" % (ta, x)); A("v_mov_b32 v%d, v%d" % (tb, x)); nop(2)
        A("%s v%d, v%d" % (sw, ta, tb)); nop(1)
        A("%s v%d, v%d, v%d" % (op, x, ta, tb))
def xadd4(x, tmp, swaps):
    for sw in swaps:
        for r in range(4): A("v_mov_b32 v%d, v%d" % (tmp + r, x + r))
        nop(2)
        for r in range(4): A("%s v%d, v%d" % (sw, x + r, tmp + r))
        nop(1)
        for r in range(4): A("v_add_f32 v%d, v%d, v%d" % (x + r, x + r, tmp + r))
P16 = "v_permlane16_swap_b32"; P32 = "v_permlane32_swap_b32"
def xlane_row(op, x, t):
    for m in ("quad_perm:[1,0,3,2]", "quad_perm:[2,3,0,1]", "row_half_mirror", "row_mirror"):
        nop(2)
        A("%s_dpp v%d, v%d, v%d %s row_mask:0xf bank_mask:0xf" % (op, t, x, x, m))
        A("v_mov_b32 v%d, v%d" % (x, t))
def tile_mfma(rows, nrows, Areg, acc, tmp, first_zero=True):
    nb = nrows // 2
    def perms(j):
        t = tmp + 4 * (j & 1); q = j >> 1; sel = sSELHI if (j & 1) else sSELLO
        for p in range(nb):
            A("v_perm_b32 v%d, v%d, v%d, s%d" % (t + p, rows + 4 * (2 * p + 1) + q, rows + 4 * (2 * p) + q, sel))
    def mf(j):
        t = tmp + 4 * (j & 1)
        c = "0" if first_zero else vr(acc + 4 * j, 4)
        if nrows == 4:
            A("v_mfma_f32_16x16x16_bf16 %s, %s, %s, %s" % (vr(acc + 4 * j, 4), vr(Areg, 2), vr(t, 2), c))
        else:
            A("v_mfma_f32_16x16x32_bf16 %s, %s, %s, %s" % (vr(acc + 4 * j, 4), vr(Areg, 4), vr(t, 4), c))
    perms(0); perms(1)
    for j in range(8):
        mf(j)
        if j + 2 < 8: perms(j + 2)
def tile_store(acc, vaddr, lo, hi):
    nop(8)
    A("s_mov_b32 exec_lo, 0x%x" % lo); A("s_mov_b32 exec_hi, 0x%x" % hi)
    for j in range(8):
        A("ds_write_b128 v%d, %s offset:%d" % (vaddr, vr(acc + 4 * j, 4), j * 32))
    A("s_mov_b64 exec, -1")
def barrier():
    A("s_waitcnt lgkmcnt(0)"); A("s_barrier")
vTB0 = 246; vTB1 = 247
def unembed(quads):
    for q in quads:
        for r in range(4): A("v_and_b32 v%d, s%d, v%d" % (q + r, sMASK, q + r))
def embed4(x):
    for r in range(4): A("v_add_u32 v%d, 0x80, v%d" % (x + r, x + r))
    for r in range(4): A("v_and_or_b32 v%d, v%d, s%d, v%d" % (x + r, x + r, sMASK, vTB0 + (r & 1)))
def embcheck(quads, acc, t1, t2, okl):
    if NOCHK:
        A("s_branch %s" % okl); return
    first = True
    for q in quads:
        for h in (0, 2):
            A("v_xor_b32 v%d, v%d, v%d" % (t1, q + h, vTB0)); A("v_xor_b32 v%d, v%d, v%d" % (t2, q + h + 1, vTB1))
            if first: A("v_or_b32 v%d, v%d, v%d" % (acc, t1, t2)); first = False
            else: A("v_or3_b32 v%d, v%d, v%d, v%d" % (acc, acc, t1, t2))
    A("v_and_b32 v%d, 0xff, v%d" % (acc, acc))
    A("v_cmp_ne_u32 vcc, 0, v%d" % acc)
    nop(1)
    A("s_cmp_eq_u64 vcc, 0")
    A("s_cbranch_scc1 %s" % okl)
def tagcheck(tags, mn, mx, okl):
    if NOCHK:
        A("s_branch %s" % okl); return
    A("v_min3_u32 v%d, v%d, v%d, v%d" % (mn, tags[0], tags[1], tags[1]))
    A("v_max3_u32 v%d, v%d, v%d, v%d" % (mx, tags[0], tags[1], tags[1]))
    for i in range(2, len(tags), 2):
        A("v_min3_u32 v%d, v%d, v%d, v%d" % (mn, mn, tags[i], tags[i + 1]))
        A("v_max3_u32 v%d, v%d, v%d, v%d" % (mx, mx, tags[i], tags[i + 1]))
    A("v_cmp_ne_u32 vcc, s%d, v%d" % (sTAG, mn))
    A("v_cmp_ne_u32 s[%d:%d], s%d, v%d" % (sT5, sT6, sTAG, mx))
    nop(1)
    A("s_or_b64 vcc, vcc, s[%d:%d]" % (sT5, sT6))
    A("s_cmp_eq_u64 vcc, 0")
    A("s_cbranch_scc1 %s" % okl)
def bounded_retry(lbl):
    A("s_sub_u32 s%d, s%d, 1" % (sCNT, sCNT))
    A("s_cmp_lg_u32 s%d, 0" % sCNT)
    A("s_cbranch_scc1 %s" % lbl)

issued = [0]
idx = {}
def LD(text, windowed=True, name=None):
    global WIN
    if windowed and issued[0] >= WIN:
        A("s_waitcnt vmcnt(%d)" % (WIN - 1))
    A(text); issued[0] += 1
    if name: idx[name] = issued[0]
def NEED(name, extra=""):
    A("s_waitcnt vmcnt(%d)%s" % (min(63, issued[0] - idx[name]), extra))
pend = []
def pop_issue(windowed=True):
    n, t = pend.pop(0); LD(t, windowed, n)
def issue_until(name):
    while name not in idx: pop_issue()
    while pend and issued[0] - (WIN - 1) < idx[name]: pop_issue()
def topup(n):
    for _ in range(n):
        if pend: pop_issue(False)

L.append("; @launch grid=(256,1,1) block=(512,1,1) lds=%d" % LDS_SIZE)
L.append('.amdgcn_target "amdgcn-amd-amdhsa--gfx950"')
L.append(".text")
L.append(".globl %s_kernel" % NAME)
L.append(".p2align 8")
L.append(".type %s_kernel,@function" % NAME)
LBL("%s_kernel" % NAME)
A("s_cmp_ge_u32 s2, 256")
A("s_cbranch_scc1 L_done")
A("s_load_dwordx16 s[16:31], s[0:1], 0")
A("s_load_dwordx8 s[32:39], s[0:1], 64")
A("v_lshrrev_b32 v1, 6, v0")
A("v_and_b32 v2, 63, v0")
A("v_and_b32 v3, 15, v0")
A("v_readfirstlane_b32 s%d, v1" % sWAVE)
A("v_lshrrev_b32 v4, 4, v2")
A("s_mov_b32 s%d, 0x05040100" % sSELLO)
A("s_mov_b32 s%d, 0x07060302" % sSELHI)
A("s_mov_b32 s%d, 0x3fb8aa3b" % sLOG2E)
A("s_mov_b32 s%d, 0x3db504f3" % sSCALE)
A("s_mov_b32 s%d, 0xffffff00" % sMASK)
A("s_mov_b32 s%d, 400000" % sCNT)
A("s_waitcnt lgkmcnt(0)")
if STAMP: A("s_memrealtime s[100:101]")
A("s_load_dword s%d, s[%d:%d], 0" % (sTAG, pWS, pWS + 1))
srd(rX, pX, 16384); srd(rWQ, pWQ, 8388608)
if PRIO in ("1", "2"): prio(1, "L_pr0")

WR = 16; GR = 32; KR = 64; VR_ = 128; ACC = 192; SC = 224; QF = 240; TMP = 8
DR = 16; WOR = 32; QG = 224; HG = 48; XR = 192; XF = 200; AF = 240; vXO = 248
vA = 5; vB = 6; vC = 7; vGU = 1; vKA = 0
s_ = 8; t_ = 9; u_ = 10; m_ = 11; r_ = 12; sd_ = 13
vVA = 249; vDA = 250; vL16 = 251; vRD = 252; vST = 253; vAF = 254; vRD2 = 255
A("v_lshlrev_b32 v%d, 4, v2" % vL16)
A("s_lshl_b32 s%d, s%d, 11" % (sA0 + 14, sWAVE))
LD("buffer_load_dwordx4 %s, v%d, %s, s%d offen" % (vr(XR, 4), vL16, sr(rX, 4), sA0 + 14))
LD("buffer_load_dwordx4 %s, v%d, %s, s%d offen offset:1024" % (vr(XR + 4, 4), vL16, sr(rX, 4), sA0 + 14), name="X")
A("v_lshrrev_b32 v%d, 3, v3" % vB)
A("v_lshlrev_b32 v%d, 2, v%d" % (vB, vB))
A("v_add_u32 v%d, v%d, v4" % (vB, vB))
A("v_and_b32 v%d, 7, v3" % vC)
A("v_mul_u32_u24 v%d, 57344, v%d" % (vGU, vB))
A("v_lshl_add_u32 v%d, v%d, 4, v%d" % (vGU, vC, vGU))
A("v_lshlrev_b32 v%d, 15, v%d" % (vB, vB))
A("v_lshl_add_u32 v%d, v%d, 4, v%d" % (vB, vC, vB))
A("s_lshr_b32 s%d, s%d, 6" % (sT0, sWG))
A("s_lshl_b32 s%d, s%d, 3" % (sT0, sT0))
A("s_add_u32 s%d, s%d, s%d" % (sT0, sT0, sWAVE))
A("s_lshl_b32 s%d, s%d, 18" % (sT0, sT0))
A("s_and_b32 s%d, s%d, 63" % (sT1, sWG))
A("s_lshl_b32 s%d, s%d, 7" % (sT1, sT1))
A("s_add_u32 s%d, s%d, s%d" % (sA0, sT0, sT1))
for i in range(1, 4): A("s_add_u32 s%d, s%d, %d" % (sA0 + i, sA0, i * 8192))
for i in range(4):
    LD("buffer_load_dwordx4 %s, v%d, %s, s%d offen%s" % (vr(WR + 4 * i, 4), vB, sr(rWQ, 4), sA0 + i, NT), windowed=False, name="W%d" % i)
srd(rK, pK, 33554432); srd(rV, pV, 33554432)
A("s_and_b32 s%d, s%d, 1" % (sT0, sWG))
A("s_cmp_eq_u32 s%d, 0" % sT0)
A("s_cselect_b32 s%d, s%d, s%d" % (rGU, pWG, pWU))
A("s_cselect_b32 s%d, s%d, s%d" % (rGU + 1, pWG + 1, pWU + 1))
A("s_and_b32 s%d, s%d, 0xffff" % (rGU + 1, rGU + 1))
A("s_mov_b32 s%d, 7340032" % (rGU + 2)); A("s_mov_b32 s%d, 0x20000" % (rGU + 3))
srd(rWD, pWD, 7340032); srd(rWO, pWO, 8388608); srd(rWS, pWS, WS_SIZE); srd(rOUT, pOUT, 16384)
A("s_and_b32 s%d, s%d, 31" % (sLO, sWG))
A("s_lshr_b32 s%d, s%d, 5" % (sHI, sWG))
A("s_lshl_b32 s%d, s%d, 8" % (sT0, sHI))
A("s_lshl_b32 s%d, s%d, 3" % (sT1, sLO))
A("s_add_u32 s%d, s%d, s%d" % (sOUTOFF, sT0, sT1))
A("v_and_b32 v%d, 7, v2" % vC)
A("v_lshlrev_b32 v%d, 11, v%d" % (vC, vC))
A("v_bfe_u32 v%d, v2, 3, 2" % vA)
A("v_lshl_add_u32 v%d, v%d, 1, v%d" % (vC, vA, vC))
LD("buffer_load_ushort v%d, v%d, %s, s%d offen" % (vXO, vC, sr(rX, 4), sOUTOFF), windowed=False)
A("s_lshr_b32 s%d, s%d, 1" % (sT0, sWG))
A("s_and_b32 s%d, s%d, 1" % (sT1, sT0))
A("s_lshr_b32 s%d, s%d, 1" % (sT2, sT0))
A("s_lshl_b32 s%d, s%d, 3" % (sT1, sT1))
A("s_add_u32 s%d, s%d, s%d" % (sT1, sT1, sWAVE))
A("s_mul_i32 s%d, s%d, %d" % (sT1, sT1, 64 * 7168))
A("s_lshl_b32 s%d, s%d, 7" % (sT2, sT2))
A("s_add_u32 s%d, s%d, s%d" % (sA0 + 4, sT1, sT2))
A("s_cmp_ge_u32 s%d, 224" % sWG)
A("s_cselect_b32 s%d, 7340032, s%d" % (sA0 + 4, sA0 + 4))
for i in range(1, 8): A("s_add_u32 s%d, s%d, %d" % (sA0 + 4 + i, sA0 + 4, i * 7168))
A("v_lshrrev_b32 v%d, 2, v3" % vKA)
A("v_lshlrev_b32 v%d, 3, v%d" % (vKA, vKA))
A("v_and_b32 v%d, 3, v3" % vC)
A("v_add_u32 v%d, v%d, v%d" % (vKA, vKA, vC))
A("v_lshlrev_b32 v%d, 8, v%d" % (vKA, vKA))
A("v_lshl_add_u32 v%d, v4, 4, v%d" % (vKA, vKA))
sKB = sA0 + 12
A("s_lshl_b32 s%d, s%d, 20" % (sKB, sLO))
A("s_lshl_b32 s%d, s%d, 17" % (sT0, sHI))
A("s_add_u32 s%d, s%d, s%d" % (sKB, sKB, sT0))
A("s_lshl_b32 s%d, s%d, 14" % (sT0, sWAVE))
A("s_add_u32 s%d, s%d, s%d" % (sKB, sKB, sT0))
A("s_add_u32 s%d, s%d, 8192" % (sKB + 1, sKB))
A("v_lshlrev_b32 v%d, 11, v4" % vVA)
A("v_lshl_add_u32 v%d, v3, 4, v%d" % (vVA, vVA))
A("v_lshlrev_b32 v%d, 13, v4" % vDA)
A("v_lshl_add_u32 v%d, v3, 4, v%d" % (vDA, vDA))
pend += [("G%d" % i, "buffer_load_dwordx4 %s, v%d, %s, s%d offen%s" % (vr(GR + 4 * i, 4), vGU, sr(rGU, 4), sA0 + 4 + i, NT)) for i in range(8)]
pend += [("K%d" % (8 * u + 4 * T + d), "buffer_load_dwordx4 %s, v%d, %s, s%d offen offset:%d%s" % (vr(KR + 16 * (2 * u + T) + 4 * d, 4), vKA, sr(rK, 4), sKB + u, T * 1024 + d * 64, NT))
         for u in range(2) for T in range(2) for d in range(4)]
vl = [("V%d" % (8 * u + e), "buffer_load_dwordx4 %s, v%d, %s, s%d offen offset:%d%s" % (vr(VR_ + 32 * u + 4 * e, 4), vVA, sr(rV, 4), sKB + u, e * 256, NT))
         for u in range(2) for e in range(8)]
pend += vl[:GPOS]
issue_until("X"); topup(EXTRA)
C("layernorm of row = wave")
NEED("X")
if STAMP:
    A("s_waitcnt lgkmcnt(0)"); A("s_mov_b32 s16, s100"); nws[0] += 1
wstamp()
for q in range(8):
    A("v_lshlrev_b32 v%d, 16, v%d" % (XF + 2 * q, XR + q))
    A("v_and_b32 v%d, 0xffff0000, v%d" % (XF + 2 * q + 1, XR + q))
A("v_add_f32 v%d, v%d, v%d" % (s_, XF, XF + 1))
for i in range(2, 16): A("v_add_f32 v%d, v%d, v%d" % (s_, s_, XF + i))
xlane_row("v_add_f32", s_, t_); xlane_hi("v_add_f32", s_, t_, u_)
A("v_mul_f32 v%d, 0x3a800000, v%d" % (m_, s_))
A("v_mov_b32 v%d, 0" % s_)
for i in range(16):
    A("v_sub_f32 v%d, v%d, v%d" % (t_, XF + i, m_))
    A("v_fmac_f32 v%d, v%d, v%d" % (s_, t_, t_))
xlane_row("v_add_f32", s_, t_); xlane_hi("v_add_f32", s_, t_, u_)
A("v_mul_f32 v%d, 0x3a800000, v%d" % (s_, s_))
bf16r(m_, t_); bf16r(s_, t_)
A("v_add_f32 v%d, 0x3727c5ac, v%d" % (s_, s_)); bf16r(s_, t_)
A("v_sqrt_f32 v%d, v%d" % (sd_, s_)); nop(1); bf16r(sd_, t_)
A("v_rcp_f32 v%d, v%d" % (r_, sd_)); nop(1)
for i in range(16): A("v_sub_f32 v%d, v%d, v%d" % (XF + i, XF + i, m_))
for q in range(8): bf16r_pair(XF + 2 * q, XF + 2 * q + 1, t_)
for i in range(16):
    A("v_mul_f32 v%d, v%d, v%d" % (t_, XF + i, r_))
    A("v_fma_f32 v%d, -v%d, v%d, v%d" % (u_, t_, sd_, XF + i))
    A("v_fma_f32 v%d, v%d, v%d, v%d" % (XF + i, u_, r_, t_))
for q in range(8): A("v_cvt_pk_bf16_f32 v%d, v%d, v%d" % (XR + q, XF + 2 * q, XF + 2 * q + 1))
A("v_add_u32 v%d, s%d, v%d" % (vA, sA0 + 14, vL16))
A("ds_write_b128 v%d, %s offset:%d" % (vA, vr(XR, 4), XN))
A("ds_write_b128 v%d, %s offset:%d" % (vA, vr(XR + 4, 4), XN + 1024))
A("s_lshl_b32 s%d, s%d, 2" % (sT0, sWAVE))
A("v_mov_b32 v%d, s%d" % (vA, sT0)); A("v_mov_b32 v%d, 0" % vB)
A("ds_write_b32 v%d, v%d offset:%d" % (vA, vB, FL))
barrier()
A("s_add_u32 s%d, s%d, 0x9e3779b9" % (sTAG, sTAG))
A("s_and_b32 s%d, s%d, 0xff" % (sT0, sTAG))
A("s_bfe_u32 s%d, s%d, 0x80008" % (sT1, sTAG))
A("v_mov_b32 v%d, s%d" % (vTB0, sT0)); A("v_mov_b32 v%d, s%d" % (vTB1, sT1))
wstamp()
C("phase A: wq half tile (two k-sets in A rows 0-7 / 8-15)")
A("v_and_b32 v%d, 7, v3" % vA)
A("v_lshlrev_b32 v%d, 11, v%d" % (vA, vA))
A("v_lshrrev_b32 v%d, 3, v3" % vB)
A("v_lshlrev_b32 v%d, 2, v%d" % (vB, vB))
A("v_add_u32 v%d, v%d, v4" % (vB, vB))
A("v_lshl_add_u32 v%d, v%d, 3, v%d" % (t_, vB, vA))
A("s_lshr_b32 s%d, s%d, 6" % (sT0, sWG))
A("s_lshl_b32 s%d, s%d, 3" % (sT0, sT0))
A("s_add_u32 s%d, s%d, s%d" % (sT0, sT0, sWAVE))
A("s_lshl_b32 s%d, s%d, 6" % (sT0, sT0))
A("v_add_u32 v%d, s%d, v%d" % (t_, sT0, t_))
A("ds_read_b64 %s, v%d offset:%d" % (vr(AF, 2), t_, XN))
A("v_lshl_add_u32 v%d, v%d, 4, v%d" % (u_, vB, vA))
A("s_lshr_b32 s%d, s%d, 1" % (sT0, sWG))
A("s_and_b32 s%d, s%d, 1" % (sT0, sT0))
A("s_lshl_b32 s%d, s%d, 3" % (sT0, sT0))
A("s_add_u32 s%d, s%d, s%d" % (sT0, sT0, sWAVE))
A("s_lshl_b32 s%d, s%d, 7" % (sT0, sT0))
A("v_add_u32 v%d, s%d, v%d" % (u_, sT0, u_))
AF2 = 242
A("ds_read_b128 %s, v%d offset:%d" % (vr(AF2, 4), u_, XN))
A("v_lshrrev_b32 v%d, 1, v4" % vA)
A("s_lshl_b32 s%d, s%d, 1" % (sT0, sWAVE))
A("v_add_u32 v%d, s%d, v%d" % (vA, sT0, vA))
A("v_mul_u32_u24 v%d, 2176, v%d" % (vA, vA))
A("v_and_b32 v%d, 7, v3" % vB)
A("v_mul_u32_u24 v%d, 272, v%d" % (vB, vB))
A("v_add_u32 v%d, v%d, v%d" % (vA, vA, vB))
A("v_and_b32 v%d, 1, v4" % vB)
A("v_lshl_add_u32 v%d, v%d, 4, v%d" % (vB, vB, vA))
A("v_add_u32 v%d, %d, v%d" % (vA, TA, vB))
A("v_mul_u32_u24 v%d, 272, v3" % vC)
A("v_lshl_add_u32 v%d, v4, 4, v%d" % (vC, vC))
A("s_mul_i32 s%d, s%d, 4352" % (sT0, sWAVE))
A("v_add_u32 v%d, s%d, v%d" % (vC, sT0, vC))
A("v_and_b32 v%d, 31, v2" % t_)
A("v_lshrrev_b32 v%d, 1, v%d" % (vRD, t_))
A("v_lshlrev_b32 v%d, 4, v%d" % (vRD, vRD))
A("v_lshl_add_u32 v%d, v%d, 7, v%d" % (vRD, t_, vRD))
A("v_lshrrev_b32 v%d, 5, v2" % u_)
A("v_mul_u32_u24 v%d, %d, v%d" % (u_, 4 * 4352, u_))
A("v_add_u32 v%d, v%d, v%d" % (vRD, vRD, u_))
A("s_lshl_b32 s%d, s%d, 2" % (sT0, sWAVE))
A("v_add_u32 v%d, s%d, v%d" % (vRD, sT0, vRD))
A("v_lshrrev_b32 v%d, 1, v3" % vRD2)
A("v_lshlrev_b32 v%d, 4, v%d" % (vRD2, vRD2))
A("v_lshl_add_u32 v%d, v3, 7, v%d" % (vRD2, vRD2))
A("v_mul_u32_u24 v%d, %d, v4" % (u_, 4 * 2176))
A("v_add_u32 v%d, v%d, v%d" % (vRD2, vRD2, u_))
A("v_add_u32 v%d, s%d, v%d" % (vRD2, sT0, vRD2))
A("s_lshl_b32 s%d, s%d, 9" % (sT0, sWAVE))
A("v_lshlrev_b32 v%d, 4, v%d" % (vST, t_))
A("v_add_u32 v%d, s%d, v%d" % (vST, sT0, vST))
issue_until("W3"); topup(EXTRA)
NEED("W3", " lgkmcnt(0)")
tile_mfma(WR, 4, AF, ACC, TMP)
tile_store(ACC, vA, 0x00ff00ff, 0xff00ff00)
barrier()
wstamp()
RB = 224
def row_reduce(T, vrd, stride, swaps):
    A("v_add_u32 v%d, %d, v%d" % (vA, T, vrd))
    for t in range(4):
        for j in range(4):
            A("ds_read_b32 v%d, v%d offset:%d" % (RB + 4 * t + j, vA, t * stride + 32 * j))
    A("s_waitcnt lgkmcnt(0)")
    for j in range(4):
        A("v_add_f32 v%d, v%d, v%d" % (RB + j, RB + j, RB + 4 + j))
        A("v_add_f32 v%d, v%d, v%d" % (RB + 8 + j, RB + 8 + j, RB + 12 + j))
    for j in range(4): A("v_add_f32 v%d, v%d, v%d" % (RB + j, RB + j, RB + 8 + j))
    xadd4(RB, RB + 4, swaps)
    embed4(RB)
def pub64(T, soff):
    if NOPUB: A("s_mov_b32 s%d, 0x%x" % (soff, WS_SIZE))
    row_reduce(T, vRD2, 2176, (P16, P32))
    A("s_mov_b64 exec, 0xffff")
    LD("buffer_store_dwordx4 %s, v%d, %s, s%d offen sc1" % (vr(RB, 4), vL16, sr(rWS, 4), soff), windowed=False)
    A("s_mov_b64 exec, -1"); nop(1)
def pubcol(T, soff):
    if NOPUB: A("s_mov_b32 s%d, 0x%x" % (soff, WS_SIZE))
    A("v_add_u32 v%d, %d, v%d" % (vA, T, 242))
    for t in range(4): A("ds_read_b128 %s, v%d offset:%d" % (vr(RB + 4 * t, 4), vA, t * 4352))
    A("s_waitcnt lgkmcnt(0)")
    for j in range(4):
        A("v_add_f32 v%d, v%d, v%d" % (RB + j, RB + j, RB + 4 + j))
        A("v_add_f32 v%d, v%d, v%d" % (RB + 8 + j, RB + 8 + j, RB + 12 + j))
    for j in range(4): A("v_add_f32 v%d, v%d, v%d" % (RB + j, RB + j, RB + 8 + j))
    xadd4(RB, RB + 4, (P32,))
    embed4(RB)
    A("s_mov_b32 exec_hi, 0")
    LD("buffer_store_dwordx4 %s, v%d, %s, s%d offen sc1" % (vr(RB, 4), 243, sr(rWS, 4), soff), windowed=False)
    A("s_mov_b64 exec, -1"); nop(1)
def pub128(T, soff):
    if NOPUB: A("s_mov_b32 s%d, 0x%x" % (soff, WS_SIZE))
    row_reduce(T, vRD, 4352, (P32,))
    A("s_mov_b32 exec_hi, 0")
    LD("buffer_store_dwordx4 %s, v%d, %s, s%d offen sc1" % (vr(RB, 4), vST, sr(rWS, 4), soff), windowed=False)
    A("s_mov_b64 exec, -1"); nop(1)
C("publish q partial row b = wave")
A("s_lshr_b32 s%d, s%d, 6" % (sT0, sWG))
A("s_lshl_b32 s%d, s%d, 3" % (sT0, sT0))
A("s_add_u32 s%d, s%d, s%d" % (sT0, sT0, sWAVE))
A("s_lshl_b32 s%d, s%d, 14" % (sT0, sT0))
A("s_and_b32 s%d, s%d, 63" % (sT1, sWG))
A("s_lshl_b32 s%d, s%d, 8" % (sT1, sT1))
A("s_add_u32 s%d, s%d, s%d" % (sT0, sT0, sT1))
A("s_add_u32 s%d, s%d, 0x%x" % (sA0, sT0, WS_Q))
while "G7" not in idx: pop_issue(False)
pub64(TA, sA0)
topup(SKIP)
C("phase B: gate/up tile (two k-sets)")
A("v_add_u32 v%d, %d, v%d" % (vA, TB, vB))
NEED("G7")
tile_mfma(GR, 8, AF2, ACC, TMP)
tile_store(ACC, vA, 0x00ff00ff, 0xff00ff00)
barrier()
wstamp()
C("publish g/u partial row b = wave (workgroups >= 224 carry no unit: their store is dropped by the range check)")
A("s_and_b32 s%d, s%d, 3" % (sT0, sWG))
A("s_and_b32 s%d, s%d, 1" % (sT1, sT0))
A("s_lshr_b32 s%d, s%d, 1" % (sT2, sT0))
A("s_lshl_b32 s%d, s%d, 1" % (sT1, sT1))
A("s_add_u32 s%d, s%d, s%d" % (sT1, sT1, sT2))
A("s_lshl_b32 s%d, s%d, 3" % (sT1, sT1))
A("s_add_u32 s%d, s%d, s%d" % (sT1, sT1, sWAVE))
A("s_mul_i32 s%d, s%d, 14336" % (sT1, sT1))
A("s_lshr_b32 s%d, s%d, 2" % (sT3, sWG))
A("s_lshl_b32 s%d, s%d, 8" % (sT3, sT3))
A("s_add_u32 s%d, s%d, s%d" % (sT1, sT1, sT3))
A("s_add_u32 s%d, s%d, 0x%x" % (sA0, sT1, WS_GU))
A("s_cmp_ge_u32 s%d, 224" % sWG)
A("s_cselect_b32 s%d, 0x%x, s%d" % (sA0, WS_SIZE, sA0))
pub64(TB, sA0)
WIN = WIN2
if PRIO == "3": prio(1, "L_pr1")
C("gathers: q head = wave of (b = w>>5, hkv = (w>>3)&3), lane (quad = lane&31, ks = 2t + (lane>>5)); g/u row b = wave, lane (quad, ks = lane>>5)")
A("s_mov_b32 s%d, s%d" % (sT0, sLO))
A("s_lshl_b32 s%d, s%d, 12" % (sT1, sLO))
A("s_lshl_b32 s%d, s%d, 9" % (sT2, sWAVE))
A("s_add_u32 s%d, s%d, s%d" % (sT1, sT1, sT2))
A("s_add_u32 s%d, s%d, 0x%x" % (sA0, sT1, WS_Q))
A("s_add_u32 s%d, s%d, 0x40000" % (sA0 + 1, sA0))
A("s_mul_i32 s%d, s%d, 448" % (sT1, sT0))
A("s_mul_i32 s%d, s%d, 14336" % (sT2, sWAVE))
A("s_add_u32 s%d, s%d, s%d" % (sT1, sT1, sT2))
A("s_add_u32 s%d, s%d, 0x%x" % (sA0 + 2, sT1, WS_GU))
A("s_add_u32 s%d, s%d, %d" % (sA0 + 3, sA0 + 2, 16 * 14336))
vQA = 1; vHA = 0
if NOGATH:
    for k in range(4): A("s_mov_b32 s%d, 0x%x" % (sA0 + k, WS_SIZE))
vQA = 14; vHA = 1
A("v_and_b32 v%d, 31, v2" % t_)
A("v_lshrrev_b32 v%d, 5, v2" % u_)
A("v_lshlrev_b32 v%d, 17, v%d" % (vQA, u_))
A("v_lshl_add_u32 v%d, v%d, 4, v%d" % (vQA, t_, vQA))
A("v_min_u32 v%d, 27, v%d" % (t_, t_))
A("v_mul_u32_u24 v%d, %d, v%d" % (vHA, 8 * 14336, u_))
A("v_lshl_add_u32 v%d, v%d, 4, v%d" % (vHA, t_, vHA))
gl = [("QG%d" % t, "buffer_load_dwordx4 %s, v%d, %s, s%d offen" % (vr(QG + 4 * t, 4), vQA, sr(rWS, 4), sA0 + t)) for t in range(2)]
gl += [("HG%d" % m, "buffer_load_dwordx4 %s, v%d, %s, s%d offen" % (vr(HG + 4 * m, 4), vHA, sr(rWS, 4), sA0 + 2 + m)) for m in range(2)]
pend += [(n, t + GSC) for n, t in gl] + vl[GPOS:]
sDW = 34 if STAMP else 16
A("s_mov_b32 s%d, s%d" % (sT0, sLO))
A("s_lshl_b32 s%d, s%d, 8" % (sT1, sHI))
A("s_lshl_b32 s%d, s%d, 15" % (sT2, sWAVE))
A("s_add_u32 s%d, s%d, s%d" % (sT1, sT1, sT2))
A("s_mul_i32 s%d, s%d, %d" % (sT3, sT0, 112 * 2048))
A("s_add_u32 s%d, s%d, s%d" % (sDW, sT3, sT1))
A("s_cmp_eq_u32 s%d, 7" % sWAVE)
A("s_cselect_b32 s%d, 7340032, s%d" % (sDW, sDW))
A("s_add_u32 s%d, s%d, 4096" % (sDW + 1, sDW))
A("s_lshl_b32 s%d, s%d, 18" % (sT3, sT0))
A("s_add_u32 s%d, s%d, s%d" % (sDW + 2, sT3, sT1))
A("s_add_u32 s%d, s%d, 4096" % (sDW + 3, sDW + 2))
pend += [("D%d" % t, "buffer_load_dwordx4 %s, v%d, %s, s%d offen offset:%d%s" % (vr(DR + 4 * t, 4), vDA, sr(rWD, 4), sDW + (t >> 1), (t & 1) * 2048, NT)) for t in range(4)]
vRC = 242; vSC = 243
A("s_lshl_b32 s%d, s%d, 4" % (sT0, sWAVE))
A("v_add_u32 v%d, s%d, v3" % (t_, sT0))
A("v_and_b32 v%d, 1, v4" % u_)
A("v_lshlrev_b32 v%d, 4, v%d" % (u_, u_))
A("v_lshl_add_u32 v%d, v%d, 5, v%d" % (vSC, t_, u_))
A("v_lshrrev_b32 v%d, 3, v%d" % (t_, t_))
A("v_lshl_add_u32 v%d, v%d, 4, v%d" % (vRC, t_, vSC))
A("v_lshrrev_b32 v%d, 1, v4" % t_)
A("v_mul_u32_u24 v%d, %d, v%d" % (t_, 4 * 4352, t_))
A("v_add_u32 v%d, v%d, v%d" % (vRC, vRC, t_))
pend += [("O%d" % t, "buffer_load_dwordx4 %s, v%d, %s, s%d offen offset:%d%s" % (vr(WOR + 4 * t, 4), vDA, sr(rWO, 4), sDW + 2 + (t >> 1), (t & 1) * 2048, NT)) for t in range(4)]
topup(SKIP)
issue_until("HG1"); topup(EXTRA)
NEED("QG1")
wstamp()
embcheck([QG, QG + 4], s_, t_, u_, "L_g_ok")
LBL("L_g_retry")
for n, t in gl[:2]: A(t + " sc1")
A("s_waitcnt vmcnt(0)")
embcheck([QG, QG + 4], s_, t_, u_, "L_g_ok")
bounded_retry("L_g_retry")
LBL("L_g_ok")
unembed([QG, QG + 4])
wstamp()
C("q -> QL[head = wave][quad]")
XT = 192
for j in range(4): A("v_add_f32 v%d, v%d, v%d" % (QG + j, QG + j, QG + 4 + j))
xadd4(QG, XT, (P32,))
A("v_cvt_pk_bf16_f32 v%d, v%d, v%d" % (QG, QG, QG + 1))
A("v_cvt_pk_bf16_f32 v%d, v%d, v%d" % (QG + 1, QG + 2, QG + 3))
A("v_lshlrev_b32 v%d, 3, v2" % vA)
A("s_lshl_b32 s%d, s%d, 8" % (sT0, sWAVE))
A("v_add_u32 v%d, s%d, v%d" % (vA, sT0, vA))
A("s_mov_b32 exec_hi, 0")
A("ds_write_b64 v%d, %s offset:%d" % (vA, vr(QG, 2), QL))
A("s_mov_b64 exec, -1")
A("s_lshl_b32 s%d, s%d, 2" % (sT0, sWAVE))
A("v_mov_b32 v%d, s%d" % (vA, sT0)); A("v_mov_b32 v%d, 1" % vB)
A("ds_write_b32 v%d, v%d offset:%d" % (vA, vB, FL))
C("h = bf16(bf16(sigmoid(g)) * u) -> HL[b = wave][quad] (quads >= 28 zero)")
NEED("HG1")
embcheck([HG, HG + 4], s_, t_, u_, "L_h_ok")
LBL("L_h_retry")
for n, t in gl[2:]: A(t + " sc1")
A("s_waitcnt vmcnt(0)")
embcheck([HG, HG + 4], s_, t_, u_, "L_h_ok")
bounded_retry("L_h_retry")
LBL("L_h_ok")
unembed([HG, HG + 4])
xadd4(HG, 56, (P32,)); xadd4(HG + 4, 56, (P32,))
for q in range(4): bf16r_pair(HG + 2 * q, HG + 2 * q + 1, t_)
for j in range(4): A("v_mul_f32 v%d, s%d, v%d" % (HG + j, sLOG2E, HG + j))
for j in range(4): A("v_exp_f32 v%d, -v%d" % (HG + j, HG + j))
nop(1)
for j in range(4): A("v_add_f32 v%d, 1.0, v%d" % (HG + j, HG + j))
for j in range(4): A("v_rcp_f32 v%d, v%d" % (HG + j, HG + j))
nop(1)
bf16r_pair(HG, HG + 1, t_); bf16r_pair(HG + 2, HG + 3, t_)
for j in range(4): A("v_mul_f32 v%d, v%d, v%d" % (HG + j, HG + j, HG + 4 + j))
A("v_cmp_gt_u32 vcc, 28, v2")
A("v_cvt_pk_bf16_f32 v%d, v%d, v%d" % (HG, HG, HG + 1))
A("v_cvt_pk_bf16_f32 v%d, v%d, v%d" % (HG + 1, HG + 2, HG + 3))
A("v_lshlrev_b32 v%d, 3, v2" % vA)
A("s_lshl_b32 s%d, s%d, 8" % (sT0, sWAVE))
A("v_add_u32 v%d, s%d, v%d" % (vA, sT0, vA))
A("v_cndmask_b32 v%d, 0, v%d, vcc" % (HG, HG))
A("v_cndmask_b32 v%d, 0, v%d, vcc" % (HG + 1, HG + 1))
A("s_mov_b32 exec_hi, 0")
A("ds_write_b64 v%d, %s offset:%d" % (vA, vr(HG, 2), HL))
A("s_mov_b64 exec, -1")
while QKPOS not in idx: pop_issue()
topup(TB4)
C("wait until all eight q heads are in LDS (flags), no workgroup barrier in the stream")
A("v_mov_b32 v%d, 0" % vA)
LBL("L_qf")
A("ds_read_b128 %s, v%d offset:%d" % (vr(192, 4), vA, FL))
A("ds_read_b128 %s, v%d offset:%d" % (vr(196, 4), vA, FL + 16))
A("s_waitcnt lgkmcnt(0)")
A("v_and_b32 v%d, v192, v193" % s_)
for i in range(194, 200): A("v_and_b32 v%d, v%d, v%d" % (s_, s_, i))
A("v_cmp_ne_u32 vcc, 1, v%d" % s_)
nop(1)
A("s_cmp_eq_u64 vcc, 0")
A("s_cbranch_scc1 L_qf_ok")
bounded_retry("L_qf")
LBL("L_qf_ok")
wstamp()
if PRIO in ("2", "3"): A("s_setprio 0")
C("QK^T")
A("v_and_b32 v%d, 7, v3" % vA)
A("v_lshlrev_b32 v%d, 8, v%d" % (vA, vA))
A("v_lshl_add_u32 v%d, v4, 4, v%d" % (vA, vA))
QF4 = 192
for d in range(4): A("ds_read_b128 %s, v%d offset:%d" % (vr(QF4 + 4 * d, 4), vA, QL + 64 * d))
for d in range(4):
    A("s_waitcnt lgkmcnt(%d)" % (3 - d))
    for t in range(4):
        c = "0" if d == 0 else vr(SC + 4 * t, 4)
        A("v_mfma_f32_16x16x32_bf16 %s, %s, %s, %s" % (vr(SC + 4 * t, 4), vr(KR + 16 * t + 4 * d, 4), vr(QF4 + 4 * d, 4), c))
topup(EXTRA)
nop(8)
C("scores: bf16 round, scale, bf16 round; max")
for q in range(8): bf16r_pair(SC + 2 * q, SC + 2 * q + 1, t_)
for i in range(16): A("v_mul_f32 v%d, s%d, v%d" % (SC + i, sSCALE, SC + i))
for q in range(8): bf16r_pair(SC + 2 * q, SC + 2 * q + 1, t_)
A("v_max3_f32 v%d, v%d, v%d, v%d" % (m_, SC, SC + 1, SC + 2))
for i in range(3, 15, 2): A("v_max3_f32 v%d, v%d, v%d, v%d" % (m_, m_, SC + i, SC + i + 1))
A("v_max_f32 v%d, v%d, v%d" % (m_, m_, SC + 15))
xlane_hi("v_max_f32", m_, t_, u_)
A("v_lshlrev_b32 v%d, 5, v3" % vA)
A("s_lshl_b32 s%d, s%d, 2" % (sT0, sWAVE))
A("v_add_u32 v%d, s%d, v%d" % (vA, sT0, vA))
A("s_mov_b64 exec, 0xff")
A("ds_write_b32 v%d, v%d offset:%d" % (vA, m_, MX))
A("s_mov_b64 exec, -1")
wstamp()
PF = 64
A("v_mul_f32 v%d, s%d, v%d" % (m_, sLOG2E, m_))
for i in range(16): A("v_fma_f32 v%d, v%d, s%d, -v%d" % (SC + i, SC + i, sLOG2E, m_))
for i in range(16): A("v_exp_f32 v%d, v%d" % (SC + i, SC + i))
nop(1)
A("v_add_f32 v%d, v%d, v%d" % (s_, SC, SC + 1))
for i in range(2, 16): A("v_add_f32 v%d, v%d, v%d" % (s_, s_, SC + i))
for q in range(8): A("v_cvt_pk_bf16_f32 v%d, v%d, v%d" % (PF + q, SC + 2 * q, SC + 2 * q + 1))
xlane_hi("v_add_f32", s_, t_, u_)
A("s_mov_b64 exec, 0xff")
A("ds_write_b32 v%d, v%d offset:%d" % (vA, s_, LS))
A("s_mov_b64 exec, -1")
C("PV, first 32 keys")
topup(EXTRA)
NEED("V7")
tile_mfma(VR_, 8, PF, ACC, TMP, True)
A("v_and_b32 v%d, 7, v3" % vB)
A("v_lshlrev_b32 v%d, 8, v%d" % (vB, vB))
A("v_lshl_add_u32 v%d, v4, 3, v%d" % (vB, vB))
A("s_lshl_b32 s%d, s%d, 5" % (sT0, sWAVE))
A("v_add_u32 v%d, s%d, v%d" % (vAF, sT0, vB))
C("PV, last 32 keys")
issue_until("V15")
while pend: pop_issue(False)
NEED("V15")
wstamp()
tile_mfma(VR_ + 32, 8, PF + 4, ACC, TMP, False)
A("v_add_u32 v%d, %d, v%d" % (vA, TC, vC))
tile_store(ACC, vA, 0xffffffff, 0)
barrier()
wstamp()
C("publish attention partial row head = wave, and {M,L} of that head")
MB = 72
A("s_lshl_b32 s%d, s%d, 15" % (sT0, sLO))
A("s_lshl_b32 s%d, s%d, 12" % (sT1, sHI))
A("s_add_u32 s%d, s%d, s%d" % (sT0, sT0, sT1))
A("s_add_u32 s%d, s%d, 0x%x" % (sA0 + 4, sT0, WS_O))
A("s_lshl_b32 s%d, s%d, 5" % (sT0, sWAVE))
A("v_mov_b32 v%d, s%d" % (vB, sT0))
A("ds_read_b128 %s, v%d offset:%d" % (vr(MB, 4), vB, LS))
A("ds_read_b128 %s, v%d offset:%d" % (vr(MB + 4, 4), vB, LS + 16))
A("ds_read_b128 %s, v%d offset:%d" % (vr(MB + 8, 4), vB, MX))
A("ds_read_b128 %s, v%d offset:%d" % (vr(MB + 12, 4), vB, MX + 16))
A("v_add_u32 v%d, %d, v%d" % (vA, TC, vRD))
for t in range(4):
    for j in range(4):
        A("ds_read_b32 v%d, v%d offset:%d" % (RB + 4 * t + j, vA, t * 4352 + 32 * j))
A("s_waitcnt lgkmcnt(15)")
A("s_waitcnt lgkmcnt(0)") if False else None
C("merge weights w_v = exp(m_v - M) of the eight waves")
A("v_max3_f32 v%d, v%d, v%d, v%d" % (MB + 16, MB + 8, MB + 9, MB + 10))
A("v_max3_f32 v%d, v%d, v%d, v%d" % (MB + 16, MB + 16, MB + 11, MB + 12))
A("v_max3_f32 v%d, v%d, v%d, v%d" % (MB + 16, MB + 16, MB + 13, MB + 14))
A("v_max_f32 v%d, v%d, v%d" % (MB + 16, MB + 16, MB + 15))
for i in range(8):
    A("v_sub_f32 v%d, v%d, v%d" % (MB + 8 + i, MB + 8 + i, MB + 16))
    A("v_mul_f32 v%d, s%d, v%d" % (MB + 8 + i, sLOG2E, MB + 8 + i))
for i in range(8): A("v_exp_f32 v%d, v%d" % (MB + 8 + i, MB + 8 + i))
A("s_mov_b32 s%d, 0" % sT5); A("s_mov_b32 s%d, -1" % sT6)
A("v_mul_f32 v%d, v%d, v%d" % (MB + 18, MB, MB + 8))
for i in range(1, 8): A("v_fmac_f32 v%d, v%d, v%d" % (MB + 18, MB + i, MB + 8 + i))
for t in range(4): A("v_cndmask_b32 v%d, v%d, v%d, s[%d:%d]" % (MB + t, MB + 8 + t, MB + 12 + t, sT5, sT6))
A("s_waitcnt lgkmcnt(0)")
for j in range(4): A("v_mul_f32 v%d, v%d, v%d" % (RB + j, RB + j, MB))
for t in range(1, 4):
    for j in range(4): A("v_fmac_f32 v%d, v%d, v%d" % (RB + j, RB + 4 * t + j, MB + t))
xadd4(RB, RB + 4, (P32,))
embed4(RB)
A("s_mov_b32 exec_hi, 0")
LD("buffer_store_dwordx4 %s, v%d, %s, s%d offen sc1" % (vr(RB, 4), vST, sr(rWS, 4), sA0 + 4), windowed=False)
A("s_mov_b64 exec, -1")
A("v_mov_b32 v%d, s%d" % (MB + 17, sTAG)); A("v_mov_b32 v%d, s%d" % (MB + 19, sTAG))
A("s_lshl_b32 s%d, s%d, 10" % (sT0, sLO))
A("s_lshl_b32 s%d, s%d, 4" % (sT1, sHI))
A("s_add_u32 s%d, s%d, s%d" % (sT0, sT0, sT1))
A("s_lshl_b32 s%d, s%d, 7" % (sT1, sWAVE))
A("s_add_u32 s%d, s%d, s%d" % (sT0, sT0, sT1))
A("s_add_u32 s%d, s%d, 0x%x" % (sA0 + 5, sT0, WS_ML))
A("v_mov_b32 v%d, 0" % vB)
A("s_mov_b64 exec, 1")
LD("buffer_store_dwordx4 %s, v%d, %s, s%d offen sc1" % (vr(MB + 16, 4), vB, sr(rWS, 4), sA0 + 5), windowed=False)
A("s_mov_b64 exec, -1")
wstamp()
vGA = 244; vGB = 245
C("attention partials for batch = wave, head h = w>>3: poll {M,L} of the 8 splits, then gather O (lane: quad = lane&31, sp = 2t + (lane>>5))")
OG = 64; MLR = 96
A("s_lshr_b32 s%d, s%d, 3" % (sT0, sLO))
A("s_and_b32 s%d, s%d, 7" % (sT1, sLO))
A("s_lshl_b32 s%d, s%d, 2" % (sT2, sWAVE))
A("s_add_u32 s%d, s%d, s%d" % (sT2, sT2, sT0))
A("s_lshl_b32 s%d, s%d, 15" % (sT3, sT2))
A("s_lshl_b32 s%d, s%d, 9" % (sT4, sT1))
A("s_add_u32 s%d, s%d, s%d" % (sT3, sT3, sT4))
A("s_add_u32 s%d, s%d, 0x%x" % (sA0, sT3, WS_O))
for t in range(1, 4): A("s_add_u32 s%d, s%d, %d" % (sA0 + t, sA0, t * 8192))
A("s_lshl_b32 s%d, s%d, 10" % (sT3, sT2))
A("s_lshl_b32 s%d, s%d, 7" % (sT4, sT1))
A("s_add_u32 s%d, s%d, s%d" % (sT3, sT3, sT4))
A("s_add_u32 s%d, s%d, 0x%x" % (sA0 + 8, sT3, WS_ML))
A("v_and_b32 v%d, 31, v2" % t_)
A("v_lshrrev_b32 v%d, 5, v2" % u_)
A("v_lshlrev_b32 v%d, 12, v%d" % (vGA, u_))
A("v_lshl_add_u32 v%d, v%d, 4, v%d" % (vGA, t_, vGA))
A("v_lshlrev_b32 v%d, 4, v%d" % (vGB, u_))
for t in range(4):
    LD("buffer_load_dwordx4 %s, v%d, %s, s%d offen offset:%d sc1" % (vr(MLR + 4 * t, 4), vGB, sr(rWS, 4), sA0 + 8, 32 * t), windowed=False)
for t in range(4):
    LD("buffer_load_dwordx4 %s, v%d, %s, s%d offen%s" % (vr(OG + 4 * t, 4), vGA, sr(rWS, 4), sA0 + t, GSC), windowed=False)
C("phase D: down half tile")
DACC = 192
A("ds_read_b64 %s, v%d offset:%d" % (vr(AF, 2), vAF, HL))
A("v_add_u32 v%d, %d, v%d" % (vA, TA, vC))
NEED("D3", " lgkmcnt(0)")
tile_mfma(DR, 4, AF, DACC, TMP)
tile_store(DACC, vA, 0xffffffff, 0)
barrier()
C("publish d partial (column-major), then pre-transpose the wo fragments")
A("s_lshl_b32 s%d, s%d, 12" % (sT0, sWG))
A("s_add_u32 s%d, s%d, 0x%x" % (sA0 + 10, sT0, WS_S))
A("s_add_u32 s%d, s%d, 0x%x" % (sA0 + 11, sT0, WS_D))
pubcol(TA, sA0 + 11)
EF = 128
NEED("O3")
for j in range(8):
    q = j >> 1; sel = sSELHI if (j & 1) else sSELLO
    for p in range(2):
        A("v_perm_b32 v%d, v%d, v%d, s%d" % (EF + 2 * j + p, WOR + 4 * (2 * p + 1) + q, WOR + 4 * (2 * p) + q, sel))
A("s_waitcnt vmcnt(0)")
tagcheck([MLR + 2 * i + 1 for i in range(8)], s_, t_, "L_pc1")
A("s_branch L_pollc")
LBL("L_pc1")
embcheck([OG + 4 * t for t in range(4)], s_, t_, u_, "L_gc_ok")
LBL("L_pollc")
A("s_sleep %d" % SLP)
for t in range(4):
    A("buffer_load_dwordx4 %s, v%d, %s, s%d offen offset:%d sc1" % (vr(MLR + 4 * t, 4), vGB, sr(rWS, 4), sA0 + 8, 32 * t))
A("s_waitcnt vmcnt(0)")
tagcheck([MLR + 2 * i + 1 for i in range(8)], s_, t_, "L_pc2")
bounded_retry("L_pollc")
A("s_branch L_gc_ok")
LBL("L_pc2")
for t in range(4):
    A("buffer_load_dwordx4 %s, v%d, %s, s%d offen sc1" % (vr(OG + 4 * t, 4), vGA, sr(rWS, 4), sA0 + t))
A("s_waitcnt vmcnt(0)")
embcheck([OG + 4 * t for t in range(4)], s_, t_, u_, "L_gc_ok")
bounded_retry("L_pc2")
LBL("L_gc_ok")
unembed([OG + 4 * t for t in range(4)])
wstamp()
C("weights while the gather flies: M over both halves")
A("v_max3_f32 v%d, v%d, v%d, v%d" % (m_, MLR, MLR + 4, MLR + 8))
A("v_max_f32 v%d, v%d, v%d" % (m_, m_, MLR + 12))
A("v_mov_b32 v%d, v%d" % (t_, m_)); A("v_mov_b32 v%d, v%d" % (u_, m_)); nop(2)
A("v_permlane32_swap_b32 v%d, v%d" % (t_, u_)); nop(1)
A("v_max_f32 v%d, v%d, v%d" % (m_, t_, u_))
WT = 112
for t in range(4):
    A("v_sub_f32 v%d, v%d, v%d" % (WT + t, MLR + 4 * t, m_))
    A("v_mul_f32 v%d, s%d, v%d" % (WT + t, sLOG2E, WT + t))
for t in range(4): A("v_exp_f32 v%d, v%d" % (WT + t, WT + t))
nop(1)
A("v_mul_f32 v%d, v%d, v%d" % (r_, WT, MLR + 2))
for t in range(1, 4): A("v_fmac_f32 v%d, v%d, v%d" % (r_, WT + t, MLR + 4 * t + 2))
A("v_mov_b32 v%d, v%d" % (t_, r_)); A("v_mov_b32 v%d, v%d" % (u_, r_)); nop(2)
A("v_permlane32_swap_b32 v%d, v%d" % (t_, u_)); nop(1)
A("v_add_f32 v%d, v%d, v%d" % (r_, t_, u_))
A("v_rcp_f32 v%d, v%d" % (r_, r_))
nop(1)
OA = 116
for j in range(4): A("v_mul_f32 v%d, v%d, v%d" % (OA + j, WT, OG + j))
for t in range(1, 4):
    for j in range(4): A("v_fmac_f32 v%d, v%d, v%d" % (OA + j, WT + t, OG + 4 * t + j))
xadd4(OA, OA + 4, (P32,))
for j in range(4): A("v_mul_f32 v%d, v%d, v%d" % (OA + j, OA + j, r_))
A("v_cvt_pk_bf16_f32 v%d, v%d, v%d" % (OA, OA, OA + 1))
A("v_cvt_pk_bf16_f32 v%d, v%d, v%d" % (OA + 1, OA + 2, OA + 3))
A("v_lshlrev_b32 v%d, 3, v2" % vA)
A("s_lshl_b32 s%d, s%d, 8" % (sT0, sWAVE))
A("v_add_u32 v%d, s%d, v%d" % (vA, sT0, vA))
A("s_mov_b32 exec_hi, 0")
A("ds_write_b64 v%d, %s offset:%d" % (vA, vr(OA, 2), OL))
A("s_mov_b64 exec, -1")
A("v_add_u32 v%d, %d, v%d" % (vB, TB, vC))
barrier()
wstamp()
C("phase E: wo half tile")
A("ds_read_b64 %s, v%d offset:%d" % (vr(AF, 2), vAF, OL))
A("s_waitcnt lgkmcnt(0)")
for j in range(8):
    A("v_mfma_f32_16x16x16_bf16 %s, %s, %s, 0" % (vr(ACC + 4 * j, 4), vr(AF, 2), vr(EF + 2 * j, 2)))
tile_store(ACC, vB, 0xffffffff, 0)
barrier()
pubcol(TB, sA0 + 10)
wstamp()
C("final gather: wave v takes producers i' = 4v + (lane>>4); lane (quad = lane&7, sd = (lane>>3)&1)")
A("v_lshlrev_b32 v%d, 12, v4" % vA)
A("v_lshrrev_b32 v%d, 3, v3" % vB)
A("v_lshl_add_u32 v%d, v%d, 21, v%d" % (vA, vB, vA))
A("v_and_b32 v%d, 7, v3" % vB)
A("v_lshl_add_u32 v%d, v%d, 4, v%d" % (vA, vB, vA))
A("s_lshl_b32 s%d, s%d, 17" % (sT1, sHI))
A("s_lshl_b32 s%d, s%d, 7" % (sT2, sLO))
A("s_add_u32 s%d, s%d, s%d" % (sT1, sT1, sT2))
A("s_lshl_b32 s%d, s%d, 14" % (sT2, sWAVE))
A("s_add_u32 s%d, s%d, s%d" % (sT1, sT1, sT2))
A("s_add_u32 s%d, s%d, 0x%x" % (sA0, sT1, WS_S))
FG = 64
LBL("L_polld")
A("buffer_load_dwordx4 %s, v%d, %s, s%d offen sc1" % (vr(FG, 4), vA, sr(rWS, 4), sA0))
A("s_waitcnt vmcnt(0)")
embcheck([FG], s_, t_, u_, "L_polld_ok")
A("s_sleep %d" % SLP2)
bounded_retry("L_polld")
LBL("L_polld_ok")
unembed([FG])
wstamp()
xadd4(FG, FG + 4, (P16, P32))
A("s_lshl_b32 s%d, s%d, 8" % (sT0, sWAVE))
A("v_add_u32 v%d, s%d, v%d" % (vA, sT0, vL16))
A("s_mov_b64 exec, 0xffff")
A("ds_write_b128 v%d, %s offset:%d" % (vA, vr(FG, 4), FS))
A("s_mov_b64 exec, -1")
barrier()
wstamp()
wdump()
A("s_cmp_lg_u32 s%d, 0" % sWAVE)
A("s_cbranch_scc1 L_done")
R0 = 64
A("v_lshlrev_b32 v%d, 2, v2" % vB)
for t in range(8): A("ds_read_b32 v%d, v%d offset:%d" % (R0 + t, vB, FS + 256 * t))
A("s_waitcnt lgkmcnt(0)")
for st in (4, 2, 1):
    for i in range(st): A("v_add_f32 v%d, v%d, v%d" % (R0 + i, R0 + i, R0 + st + i))
bf16r(R0, t_)
A("v_mul_f32 v%d, s%d, v%d" % (R0 + 1, sLOG2E, R0))
A("v_exp_f32 v%d, -v%d" % (R0 + 1, R0 + 1)); nop(1)
A("v_add_f32 v%d, 1.0, v%d" % (R0 + 1, R0 + 1))
A("v_rcp_f32 v%d, v%d" % (R0 + 1, R0 + 1)); nop(1)
A("v_mul_f32 v%d, v%d, v%d" % (R0 + 1, R0 + 1, R0))
bf16r(R0 + 1, t_)
A("v_mov_b32 v%d, v%d" % (R0 + 2, R0 + 1)); nop(2)
A("v_permlane32_swap_b32 v%d, v%d" % (R0 + 1, R0 + 2)); nop(1)
A("v_mul_f32 v%d, v%d, v%d" % (R0, R0, R0 + 2))
bf16r(R0, t_)
A("v_lshlrev_b32 v%d, 16, v%d" % (vXO, vXO))
A("v_add_f32 v%d, v%d, v%d" % (R0, R0, vXO))
A("v_cvt_pk_bf16_f32 v%d, v%d, v%d" % (R0, R0, R0))
A("v_and_b32 v%d, 7, v2" % vA)
A("v_lshlrev_b32 v%d, 11, v%d" % (vA, vA))
A("v_bfe_u32 v%d, v2, 3, 2" % vB)
A("v_lshl_add_u32 v%d, v%d, 1, v%d" % (vA, vB, vA))
A("s_mov_b32 exec_hi, 0")
A("buffer_store_short v%d, v%d, %s, s%d offen" % (R0, vA, sr(rOUT, 4), sOUTOFF))
A("s_mov_b64 exec, -1")
C("workgroup 0 advances the epoch word for the next launch")
A("s_cmp_lg_u32 s%d, 0" % sWG)
A("s_cbranch_scc1 L_done")
A("v_mov_b32 v%d, s%d" % (vA, sTAG)); A("v_mov_b32 v%d, 0" % vB)
A("s_mov_b64 exec, 1")
A("buffer_store_dword v%d, v%d, %s, 0 offen sc1" % (vA, vB, sr(rWS, 4)))
LBL("L_done")
A("s_endpgm")
L.append('.section .rodata,"a"')
L.append(".p2align 6")
L.append(".amdhsa_kernel %s_kernel" % NAME)
L.append("  .amdhsa_next_free_vgpr 256")
L.append("  .amdhsa_next_free_sgpr 102")
L.append("  .amdhsa_accum_offset 256")
L.append("  .amdhsa_group_segment_fixed_size 0")
L.append("  .amdhsa_kernarg_size 96")
L.append("  .amdhsa_user_sgpr_count 2")
L.append("  .amdhsa_user_sgpr_kernarg_segment_ptr 1")
L.append("  .amdhsa_system_sgpr_workgroup_id_x 1")
L.append(".end_amdhsa_kernel")
print("\n".join(L))
sys.stderr.write("ops %d stamps %d\n" % (issued[0], nws[0]))
```
